```python
import torch

def _softmax(x, axis=-1):
    return torch.softmax(x, dim=axis)
def _gelu(x):
    return torch.nn.functional.gelu(x, approximate="tanh")
def _silu(x):
    return torch.nn.functional.silu(x)
def _sigmoid(x):
    return torch.sigmoid(x)
def _layernorm(x, axis=-1, eps=1e-5):
    m = x.mean(dim=axis, keepdim=True)
    v = x.var(dim=axis, keepdim=True, unbiased=False)
    return (x - m) / torch.sqrt(v + eps)
def _scatter_add(tgt, idx, src, axis=0):
    return tgt.clone().index_add_(axis, idx, src)
def _segment_sum(src, seg, n):
    out = torch.zeros((n,) + src.shape[1:], dtype=src.dtype)
    return out.index_add_(0, seg, src)
def _pad(x, pw):
    flat = tuple(v for pair in reversed(pw) for v in pair)
    return torch.nn.functional.pad(x, flat)

kernel_name = 'gather_scatter__cheap_equivariant_egnn__graph'

def setup_inputs():

    _w = (lambda a: (lambda t: t.to(torch.bfloat16) if t.is_floating_point() else t)(torch.as_tensor(a)))
    N, deg, D, De = 10000, 32, 128, max(4, 1)
    E = N * deg
    return {
        "h": _w((lambda *s: torch.randn(*s, dtype=torch.bfloat16) * 0.1)(N, D)),
        "pos": _w((lambda *s: torch.randn(*s, dtype=torch.bfloat16) * 0.8)(N, 3)),
        "e_attr": _w((lambda *s: torch.randn(*s, dtype=torch.bfloat16) * 0.8)(E, De)),
        "src": _w((lambda lo, hi, *s: torch.randint(lo, hi, s))(0, N, E).to(torch.int64)),
        "dst": _w((lambda lo, hi, *s: torch.randint(lo, hi, s))(0, N, E).to(torch.int64)),
        "w_e": _w(0.1 * (lambda *s: torch.randn(*s, dtype=torch.bfloat16) * 0.8)(2 * D + 1 + De, D)),
        "w_x": _w(0.1 * (lambda *s: torch.randn(*s, dtype=torch.bfloat16) * 0.1)(D, 1)),
        "w_h": _w(0.1 * (lambda *s: torch.randn(*s, dtype=torch.bfloat16) * 0.1)(2 * D, D)),
    }

def reference(h, pos, e_attr, src, dst, w_e, w_x, w_h):
    N, D = h.shape[0], h.shape[1]
    diff = pos[dst] - pos[src]
    dist2 = torch.sum(diff * diff, axis=-1, keepdims=True)
    e_in = torch.concatenate([h[dst], h[src], dist2, e_attr], axis=-1)
    m_ij = _silu(e_in @ w_e)
    coord_scale = m_ij @ w_x
    pos_new = pos + _segment_sum(diff * coord_scale, dst, N)
    m_i = _segment_sum(m_ij, dst, N)
    h_new = h + _silu(torch.concatenate([h, m_i], axis=-1) @ w_h)
    return h_new, pos_new
```

```python
class Asm:
    def __init__(self):
        self.lines = []
        self._lab = 0
    def __call__(self, s):
        for ln in s.split("\n"):
            ln = ln.strip()
            if ln:
                if ln.endswith(":") or ln.startswith("."):
                    self.lines.append(ln)
                else:
                    self.lines.append("    " + ln)
    def c(self, s):
        self.lines.append("    ; " + s)
    def label(self, base="L"):
        self._lab += 1
        return f"{base}_{self._lab}"
    def text(self):
        return "\n".join(self.lines) + "\n"

def v(a, n=1):
    return f"v{a}" if n == 1 else f"v[{a}:{a+n-1}]"
def s(a, n=1):
    return f"s{a}" if n == 1 else f"s[{a}:{a+n-1}]"

def interleave(base, ins):
    L = []
    for i, b in enumerate(base):
        L += ins.get(i, [])
        L.append(b)
    L += ins.get(len(base), [])
    return L

STAMPS = False
WS_DBG = 0x2000000
def stamp(a, idx, base=64):
    if not STAMPS: return
    a(f"s_memtime s[{base+2*idx}:{base+2*idx+1}]")
    a("s_waitcnt lgkmcnt(0)")
def stamp_rt(a, idx, base=64):
    if not STAMPS: return
    a(f"s_memrealtime s[{base+2*idx}:{base+2*idx+1}]")
    a("s_waitcnt lgkmcnt(0)")
def stamp_flush(a, n, srd, kernel_idx, vtmp, wave_sgpr, base=64):
    if not STAMPS: return
    a("s_mov_b64 exec, 1")
    a(f"s_lshl_b32 s{base+2*n}, s2, 4")
    a(f"s_add_u32 s{base+2*n}, s{base+2*n}, s{wave_sgpr}")
    a(f"s_lshl_b32 s{base+2*n}, s{base+2*n}, 7")
    a(f"s_add_u32 s{base+2*n}, s{base+2*n}, {WS_DBG + kernel_idx*0x100000}")
    a(f"v_mov_b32 v{vtmp+1}, 0")
    for i in range(n):
        a(f"v_mov_b32 v{vtmp}, s{base+2*i}")
        a(f"buffer_store_dword v{vtmp}, v{vtmp+1}, s[{srd}:{srd+3}], s{base+2*n} offen offset:{4*i}")
        a("s_nop 1")
```

```python
import asmlib
from asmlib import Asm, v, s, interleave, stamp, stamp_rt, stamp_flush

NAME = "gather_scatter__cheap_equivariant_egnn__graph"
N = 10000; E = 320000
NCH = 125; CH = 2560
WS_BP = 0
WS_AP = 0x300000
WS_OFFS = 0x600000
WS_REC = 0x700000
REC_STRIDE = CH * 24
WS_WHF = 0xF00000
WS_SIZE = 0x10000000
NEG_LOG2E = 0xbfb8aa3b
NEG_LN2 = 0xbf317218

K2_GRID = 250
CAPT = 48
CAPS = CAPT * 32
GB = 0
IMG = 32768
IMG_BYTES = CAPT * 2560
DELTA = IMG + IMG_BYTES
TOT = DELTA + 4096
POSACC = TOT + 64
K2_LDS = POSACC + 640
MB1 = 0
MBF = 24576
HBF = 45056
K2_VGPR = 256
K2_SGPR = 102

vLANE = 1
vA0, vA1, vT, vX, vO, vS, vK = 2, 3, 4, 5, 6, 7, 8
vRA, vRB, vCNT, vIDX, vDB = 9, 10, 11, 12, 13
SO = 14; VOFF = 16
ONES = 20; IDENT = 24; WEXT = 32; APS = 36
AF = 48; XE = 56; SA = 60; SB = 64; M = 68
ACC2 = 80
Y = [96, 112]; U = [128, 144]
SAVED = 160
WXR = 240; HR = 248
sWAVE, sCT, sPAR = 3, 4, 5
P_H, P_POS, P_EA, P_SRC, P_DST, P_WE, P_WX, P_WH, P_OUT, P_WS = 16, 18, 20, 22, 24, 26, 28, 30, 32, 34
R_WS, R_H, R_OUT, R_WE, R_WX, R_POS, R_OFFS = 36, 40, 44, 48, 52, 56, 60
sB = 6
sI, sN, sTG1, sTG2, sNB1, sNB2, sF2 = 12, 13, 14, 15, 20, 21, 22
sRET = 24
sM0A = 23
sRBASE = 96
sJB = 97
sT0, sT1, sT2 = 98, 99, 100
sB40 = 101
STB = 64

def srd(a, d, base, nbytes):
    a(f"s_mov_b32 {s(d)}, {s(base)}")
    a(f"s_and_b32 {s(d+1)}, {s(base+1)}, 0xffff")
    a(f"s_mov_b32 {s(d+2)}, {nbytes}")
    a(f"s_mov_b32 {s(d+3)}, 0x00020000")

RECA = lambda j: 96 + 4*j
RECB = lambda j: 128 + 2*j

def issue_records(a, tag):
    done = a.label("K2_ISS_DONE")
    for j in range(8):
        a(f"v_cmpx_lt_i32 vcc, {4*j}, {v(vCNT)}")
        a(f"s_cbranch_execz {done}")
        a(f"buffer_load_dwordx4 {v(RECA(j),4)}, {v(vRA)}, {s(R_WS,4)}, 0 offen offset:{64*j}")
        a(f"buffer_load_dwordx2 {v(RECB(j),2)}, {v(vRB)}, {s(R_WS,4)}, 0 offen offset:{32*j}")
    a(f"{done}:")
    a("s_mov_b64 exec, -1")

def zero_img(a, vaddr, z):
    assert IMG_BYTES % 8192 == 0
    n = IMG_BYTES // 8192
    for i in range(n):
        if i == 8:
            a(f"v_add_u32 {v(vaddr)}, 65536, {v(vaddr)}")
        a(f"ds_write_b128 {v(vaddr)}, {v(z,4)} offset:{(i%8)*8192}")

def gen_k2(a):
    a(".p2align 8")
    a(f".type {NAME}_kernel,@function")
    a(f"{NAME}_kernel:")
    a(f"s_cmp_ge_u32 s2, {K2_GRID}")
    a("s_cbranch_scc1 K2_END")
    stamp_rt(a, 0, STB)
    stamp(a, 1, STB)
    a("s_load_dwordx16 s[16:31], s[0:1], 0")
    a("s_load_dwordx2 s[32:33], s[0:1], 64")
    a("s_load_dwordx2 s[34:35], s[0:1], 80")
    a("v_lshrrev_b32 v18, 6, v0")
    a(f"v_and_b32 {v(vLANE)}, 63, v0")
    a("v_lshrrev_b32 v19, 2, v0")
    a(f"v_readfirstlane_b32 {s(sWAVE)}, v18")
    a("v_and_b32 v46, 3, v0")
    a("v_mul_u32_u24 v47, 5120, v19")
    a("v_lshl_add_u32 v76, v46, 2, v47")
    a(f"s_mul_i32 {s(sT0)}, s2, 20")
    a(f"s_and_b32 {s(sCT)}, {s(sWAVE)}, 3")
    a(f"s_lshr_b32 {s(sPAR)}, {s(sWAVE)}, 2")
    a("s_waitcnt lgkmcnt(0)")
    a(f"s_add_u32 {s(R_OFFS)}, {s(P_WS)}, {WS_OFFS}")
    a(f"s_addc_u32 {s(R_OFFS+1)}, {s(P_WS+1)}, 0")
    a(f"s_and_b32 {s(R_OFFS+1)}, {s(R_OFFS+1)}, 0xffff")
    a(f"s_mov_b32 {s(R_OFFS+2)}, {NCH*5120}")
    a(f"s_mov_b32 {s(R_OFFS+3)}, 0x00020000")
    a(f"buffer_load_dword v144, v47, {s(R_OFFS,4)}, {s(sT0)} offen")
    a(f"buffer_load_dwordx2 v[148:149], v47, {s(R_OFFS,4)}, {s(sT0)} offen offset:16")
    a(f"buffer_load_dwordx2 v[146:147], v76, {s(R_OFFS,4)}, {s(sT0)} offen")
    srd(a, R_WS, P_WS, WS_SIZE)
    srd(a, R_WE, P_WE, 261*256)
    srd(a, R_H, P_H, N*256)
    srd(a, R_WX, P_WX, 256)
    a(f"v_lshrrev_b32 v77, 5, {v(vLANE)}")
    a(f"v_and_b32 v78, 31, {v(vLANE)}")
    a(f"v_lshlrev_b32 v79, 3, {v(vLANE)}")
    a(f"s_mul_i32 {s(sT0)}, s2, 10240")
    a(f"s_lshl_b32 {s(sT1)}, {s(sCT)}, 9")
    a(f"s_add_u32 {s(sT1)}, {s(sT1)}, {s(sT0)}")
    a(f"s_add_u32 {s(sT1)}, {s(sT1)}, {WS_AP}")
    for f in range(5):
        if f in (2, 4):
            a(f"s_add_u32 {s(sT1)}, {s(sT1)}, 4096")
        a(f"buffer_load_dwordx2 {v(APS+2*f,2)}, v79, {s(R_WS,4)}, {s(sT1)} offen offset:{(f%2)*2048}")
    a("v_sub_u32 v48, 1, v77")
    a("v_lshlrev_b32 v48, 8, v48")
    a("v_lshl_add_u32 v48, v78, 1, v48")
    a(f"s_lshl_b32 {s(sT1)}, {s(sCT)}, 6")
    a(f"s_add_u32 {s(sT2)}, {s(sT1)}, 65536")
    for j in range(4):
        a(f"buffer_load_ushort {v(52+j)}, v48, {s(R_WE,4)}, {s(sT2)} offen offset:{256*j}")
    a("v_lshlrev_b32 v49, 3, v77")
    for q in range(4):
        a(f"buffer_load_dwordx2 {v(WXR+2*q,2)}, v49, {s(R_WX,4)}, {s(sT1)} offen offset:{16*q}")
    a("v_lshlrev_b32 v50, 4, v0")
    a(f"buffer_load_dwordx4 {v(HR,4)}, v50, {s(R_H,4)}, {s(sT0)} offen")
    a(f"s_add_u32 {s(sT0)}, {s(sT0)}, 8192")
    a(f"buffer_load_dwordx4 {v(HR+4,4)}, v50, {s(R_H,4)}, {s(sT0)} offen")
    NEARLY = 5 + 4 + 4 + 2
    for r in range(4):
        a(f"v_mov_b32 {v(ONES+r)}, 0")
    a(f"v_add_u32 v51, {IMG}, v50")
    zero_img(a, 51, ONES)
    a(f"v_lshlrev_b32 v51, 2, v0")
    a(f"v_add_u32 v51, {TOT}, v51")
    a(f"v_cmp_gt_u32 vcc, {(64+640)//4}, v0")
    a(f"s_and_saveexec_b64 {s(sRET,2)}, vcc")
    a(f"ds_write_b32 v51, {v(ONES)}")
    a("s_mov_b64 exec, -1")
    stamp(a, 2, STB)
    a(f"s_mov_b32 {s(sT0)}, {REC_STRIDE}")
    a(f"v_mul_lo_u32 v47, v19, {s(sT0)}")
    a(f"v_add_u32 v47, {WS_REC}, v47")
    a(f"s_waitcnt vmcnt({NEARLY+1})")
    stamp(a, 3, STB)
    a(f"v_add_u32 {v(vIDX)}, v144, v46")
    a(f"v_sub_u32 {v(vCNT)}, v149, {v(vIDX)}")
    a(f"v_lshl_add_u32 {v(vRA)}, {v(vIDX)}, 4, v47")
    a(f"v_lshl_add_u32 {v(vRB)}, {v(vIDX)}, 3, v47")
    a(f"v_add_u32 {v(vRB)}, {CH*16}, {v(vRB)}")
    a(f"s_waitcnt vmcnt({NEARLY})")
    a("v_sub_u32 v150, v147, v146")
    a("v_sub_u32 v151, v149, v148")
    issue_records(a, "first")
    a(f"v_lshlrev_b32 v152, 2, v46")
    a(f"v_add_u32 v152, {TOT}, v152")
    a("s_waitcnt lgkmcnt(0)")
    a("s_barrier")
    a("ds_add_rtn_u32 v153, v152, v150")
    a("s_mov_b64 exec, 0x1111111111111111" if False else "s_mov_b32 exec_lo, 0x11111111\ns_mov_b32 exec_hi, 0x11111111")
    a("ds_add_rtn_u32 v154, v152, v151 offset:16")
    a("s_mov_b64 exec, -1")
    a(f"v_lshlrev_b32 {v(vDB)}, 5, v19")
    a(f"v_add_u32 {v(vDB)}, {DELTA}, {v(vDB)}")
    a("v_lshlrev_b32 v155, 4, v77")
    a("v_sub_u32 v155, v78, v155")
    a("v_lshlrev_b32 v155, 4, v155")
    a("v_mov_b32 v158, 0x3f80")
    for sidx in range(2):
        for dw in range(4):
            z0 = 4*sidx + 8*(dw >> 1) + 2*(dw & 1)
            a(f"v_subrev_u32 v156, {16*z0}, v155")
            a("v_cmp_gt_u32 vcc, 32, v156")
            a("v_lshlrev_b32 v157, v156, v158")
            a("s_nop 0")
            a(f"v_cndmask_b32 {v(IDENT+4*sidx+dw)}, 0, v157, vcc")
    a("s_waitcnt lgkmcnt(0)")
    a("s_barrier")
    stamp(a, 4, STB)
    a(f"v_mov_b32 v155, {TOT}")
    a("ds_read_b128 v[156:159], v155")
    a("ds_read_b32 v155, v155 offset:16")
    a(f"s_mul_i32 {s(sT0)}, {s(sPAR)}, 2560")
    a(f"s_add_u32 {s(sT0)}, {s(sT0)}, {IMG}")
    a(f"s_lshl_b32 {s(sM0A)}, {s(sWAVE)}, 12")
    if GB: a(f"s_add_u32 {s(sM0A)}, {s(sM0A)}, {GB}")
    a(f"s_mul_i32 {s(sB40)}, s2, 40")
    L = vLANE
    a(f"v_lshrrev_b32 v18, 4, {v(L)}")
    a(f"v_and_b32 v19, 3, {v(L)}")
    a(f"v_xor_b32 {v(vK)}, v18, v19")
    a(f"v_lshlrev_b32 {v(vK)}, 4, {v(vK)}")
    a(f"s_lshl_b32 {s(sT1)}, {s(sCT)}, 6")
    a(f"v_add_u32 {v(vK)}, {s(sT1)}, {v(vK)}")
    a("v_bfe_u32 v47, v78, 2, 2")
    a("v_xor_b32 v47, v47, v77")
    a("v_lshlrev_b32 v47, 4, v47")
    a(f"v_lshl_add_u32 {v(vA0)}, v78, 6, v47")
    a(f"v_add_u32 {v(vA0)}, {s(sM0A)}, {v(vA0)}")
    a(f"v_xor_b32 {v(vA1)}, 32, {v(vA0)}")
    def slot16(dst, rho, t):
        a(f"v_and_b32 {v(dst)}, 3, {v(rho)}")
        a(f"v_bfe_u32 {v(t)}, {v(rho)}, 2, 1")
        a(f"v_lshl_or_b32 {v(dst)}, {v(t)}, 3, {v(dst)}")
        a(f"v_bfe_u32 {v(t)}, {v(rho)}, 3, 1")
        a(f"v_lshl_or_b32 {v(dst)}, {v(t)}, 2, {v(dst)}")
    a(f"v_lshrrev_b32 v47, 2, {v(L)}")
    slot16(vO, 47, 76)
    a(f"v_lshlrev_b32 {v(vO)}, 4, {v(vO)}")
    a(f"v_add_u32 {v(vO)}, {1024+12}, {v(vO)}")
    a(f"v_add_u32 {v(vO)}, {s(sT0)}, {v(vO)}")
    slot16(vX, 78, 76)
    a(f"v_lshlrev_b32 {v(vX)}, 4, {v(vX)}")
    a(f"v_lshl_add_u32 {v(vX)}, v77, 3, {v(vX)}")
    a("v_bfe_u32 v47, v78, 4, 1")
    a("v_mul_u32_u24 v47, 1280, v47")
    a(f"v_add3_u32 {v(vX)}, {v(vX)}, v47, {s(sT0)}")
    a(f"v_add_u32 {v(vX)}, 1024, {v(vX)}")
    a(f"v_bfe_u32 v76, {v(L)}, 2, 2")
    a("v_lshl_add_u32 v76, v77, 2, v76")
    a(f"v_lshl_add_u32 {v(vT)}, v76, 4, v47")
    a("v_and_b32 v76, 1, v19")
    a(f"v_lshl_add_u32 {v(vT)}, v76, 9, {v(vT)}")
    a("v_lshrrev_b32 v76, 1, v19")
    a(f"v_lshl_add_u32 {v(vT)}, v76, 3, {v(vT)}")
    a(f"v_add_u32 {v(vT)}, {s(sT0)}, {v(vT)}")
    a(f"s_sub_u32 {s(sT0)}, {s(sT0)}, 5120")
    a(f"v_lshlrev_b32 {v(vS)}, 4, {v(L)}")
    a(f"v_add_u32 {v(vS)}, {s(sT0)}, {v(vS)}")
    a("s_waitcnt lgkmcnt(0)")
    for f in range(4):
        a(f"v_readfirstlane_b32 {s(sB+1+f)}, {v(156+f)}")
    a(f"v_readfirstlane_b32 {s(sB+5)}, v155")
    a(f"s_mov_b32 {s(sB)}, 0")
    a("s_nop 2")
    for f in range(5):
        a(f"s_add_u32 {s(sB+1+f)}, {s(sB+1+f)}, 31")
        a(f"s_lshr_b32 {s(sB+1+f)}, {s(sB+1+f)}, 5")
        a(f"s_add_u32 {s(sB+1+f)}, {s(sB+1+f)}, {s(sB+f)}")
    a("v_sub_u32 v153, v153, v146")
    a("v_sub_u32 v154, v154, v148")
    for f in range(1, 4):
        m = 0x11111111 << f
        a(f"s_lshl_b32 {s(sT0)}, {s(sB+f)}, 5")
        a(f"s_mov_b32 exec_lo, {m:#x}\ns_mov_b32 exec_hi, {m:#x}")
        a(f"v_add_u32 v153, {s(sT0)}, v153")
    a(f"s_lshl_b32 {s(sT0)}, {s(sB+4)}, 5")
    a("s_mov_b32 exec_lo, 0x11111111\ns_mov_b32 exec_hi, 0x11111111")
    a(f"v_add_u32 v154, {s(sT0)}, v154")
    a(f"ds_write_b32 {v(vDB)}, v154 offset:16")
    a("s_mov_b64 exec, -1")
    a(f"v_lshl_add_u32 v152, v46, 2, {v(vDB)}")
    a("ds_write_b32 v152, v153")
    a("s_mov_b32 exec_hi, 0")
    a(f"v_mov_b32 {v(ONES)}, 0x3f80")
    a("s_mov_b64 exec, -1")
    for r in range(80):
        a(f"v_mov_b32 {v(SAVED+r)}, 0")
    a(f"s_mov_b32 {s(sRBASE)}, 0")
    a(f"s_mov_b32 {s(sJB)}, 0")
    a("s_waitcnt vmcnt(0)")
    stamp(a, 5, STB)
    a(f"s_mov_b32 {s(sT0)}, {NEG_LOG2E:#x}")
    for j in range(4):
        a(f"v_lshlrev_b32 {v(52+j)}, 16, {v(52+j)}")
        a(f"v_mul_f32 {v(52+j)}, {s(sT0)}, {v(52+j)}")
    a(f"v_cvt_pk_bf16_f32 {v(WEXT+2)}, v52, v53")
    a(f"v_cvt_pk_bf16_f32 {v(WEXT+3)}, v54, v55")
    a(f"v_lshlrev_b32 v53, 16, {v(WEXT+2)}")
    a("v_sub_f32 v53, v52, v53")
    a("s_mov_b32 exec_lo, 0")
    a(f"v_cvt_pk_bf16_f32 {v(WEXT+2)}, v52, v53")
    a(f"v_mov_b32 {v(WEXT+3)}, 0")
    a("s_mov_b64 exec, -1")
    a("K2_BATCH:")
    a("s_waitcnt vmcnt(0)")
    a("v_mov_b32 v158, 0x3f80")
    a(f"v_mov_b32 v159, {IMG}")
    done = "K2_PA_DONE"
    for j in range(8):
        a(f"v_cmpx_lt_i32 vcc, {4*j}, {v(vCNT)}")
        a(f"s_cbranch_execz {done}")
        a(f"v_lshrrev_b32 {v(48+j)}, 16, {v(RECB(j)+1)}")
        a(f"v_subrev_u32 {v(48+j)}, {s(sB40)}, {v(48+j)}")
        a(f"v_lshrrev_b32 {v(56+j)}, 3, {v(48+j)}")
        a(f"v_lshl_add_u32 {v(56+j)}, {v(56+j)}, 2, {v(vDB)}")
        a(f"ds_read_b32 {v(56+j)}, {v(56+j)}")
    a(f"{done}:")
    a("s_mov_b64 exec, -1")
    a(f"s_lshl_b32 {s(sT0)}, {s(sRBASE)}, 5")
    a(f"v_subrev_u32 v64, {s(sT0)}, {v(vIDX)}")
    a(f"s_mov_b32 {s(sT1)}, {CAPS}")
    a("s_waitcnt lgkmcnt(0)")
    done = "K2_PB_DONE"
    for j in range(8):
        a(f"v_cmpx_lt_i32 vcc, {4*j}, {v(vCNT)}")
        a(f"s_cbranch_execz {done}")
        a(f"v_add3_u32 v65, v64, {v(56+j)}, {4*j}")
        a(f"v_cmp_gt_u32 vcc, {s(sT1)}, v65")
        a(f"s_and_saveexec_b64 {s(sRET,2)}, vcc")
        a("v_lshrrev_b32 v66, 4, v65")
        a("v_and_b32 v65, 15, v65")
        a("v_mul_u32_u24 v66, 1280, v66")
        a("v_mul_u32_u24 v67, 66, v65")
        a("v_add_u32 v66, v66, v159")
        a("v_and_b32 v67, 0x20e, v67")
        a("v_lshl_add_u32 v65, v65, 4, v66")
        a(f"v_and_b32 v68, 7, {v(48+j)}")
        a("v_lshl_add_u32 v67, v68, 4, v67")
        a("v_add_u32 v67, v67, v66")
        a(f"ds_write_b128 v65, {v(RECA(j),4)} offset:1024")
        a("ds_write_b16 v67, v158")
        a(f"ds_write_b16 v67, {v(RECB(j))} offset:128")
        a(f"ds_write_b16_d16_hi v67, {v(RECB(j))} offset:256")
        a(f"ds_write_b16 v67, {v(RECB(j)+1)} offset:384")
        a(f"s_mov_b64 exec, {s(sRET,2)}")
    a(f"{done}:")
    a("s_mov_b64 exec, -1")
    a(f"v_cmp_lt_i32 vcc, 32, {v(vCNT)}")
    a("s_cbranch_vccnz K2_MOREBATCH")
    a("K2_BUILT:")
    a(f"s_sub_u32 {s(sN)}, {s(sB+5)}, {s(sRBASE)}")
    a(f"s_min_u32 {s(sN)}, {s(sN)}, {CAPT}")
    a(f"s_add_u32 {s(sN)}, {s(sN)}, 1")
    a(f"s_sub_u32 {s(sN)}, {s(sN)}, {s(sPAR)}")
    a(f"s_lshr_b32 {s(sN)}, {s(sN)}, 1")
    for r in list(range(SA, SA+16)) + list(range(ACC2, ACC2+16)) + list(range(Y[1], Y[1]+16)) + list(range(U[1], U[1]+16)):
        a(f"v_mov_b32 {v(r)}, 0")
    a(f"s_add_u32 {s(sTG1)}, {s(sRBASE)}, {s(sPAR)}")
    a(f"s_sub_u32 {s(sTG2)}, {s(sTG1)}, 2")
    a(f"s_mov_b32 {s(sF2)}, 0")
    a(f"s_mov_b32 {s(sNB2)}, {s(sB+1)}")
    a(f"s_call_b64 {s(sRET,2)}, K2_WEXT")
    a(f"s_add_u32 {s(sTG1)}, {s(sTG1)}, 2")
    a(f"s_mov_b32 {s(sI)}, 0")
    a("s_waitcnt lgkmcnt(0)")
    a("s_barrier")
    stamp(a, 6, STB)
    a(f"s_cmp_eq_u32 {s(sN)}, 0")
    a("s_cbranch_scc1 K2_ROUND_END")
    def dma(so, buf):
        a(f"v_add_u32 {v(VOFF)}, {v(so)}, {v(vK)}")
        a(f"v_add_u32 {v(VOFF+1)}, {v(so+1)}, {v(vK)}")
        a(f"s_add_u32 m0, {s(sM0A)}, {buf*2048}")
        a("s_nop 0")
        a(f"buffer_load_dwordx4 {v(VOFF)}, {s(R_WS,4)}, 0 offen lds")
        a(f"s_add_u32 m0, {s(sM0A)}, {buf*2048+1024}")
        a("s_nop 0")
        a(f"buffer_load_dwordx4 {v(VOFF+1)}, {s(R_WS,4)}, 0 offen lds")
    def Lreads(buf, toff):
        return [f"ds_read_b128 {v(AF,4)}, {v(vA0)} offset:{buf*2048}",
                f"ds_read_b128 {v(AF+4,4)}, {v(vA1)} offset:{buf*2048}",
                f"ds_read_b64_tr_b16 {v(XE,2)}, {v(vT)} offset:{toff*5120}",
                f"ds_read_b64 {v(XE+2,2)}, {v(vX)} offset:{toff*5120}"]
    def G1(y):
        return [f"v_mfma_f32_32x32x16_bf16 {v(y,16)}, {v(AF,4)}, {v(IDENT,4)}, 0",
                f"v_mfma_f32_32x32x16_bf16 {v(y,16)}, {v(AF+4,4)}, {v(IDENT+4,4)}, {v(y,16)}",
                f"v_mfma_f32_32x32x16_bf16 {v(y,16)}, {v(XE,4)}, {v(WEXT,4)}, {v(y,16)}"]
    G2a = f"v_mfma_f32_32x32x16_bf16 {v(ACC2,16)}, {v(M,4)}, {v(SA,4)}, {v(ACC2,16)}"
    G2b = f"v_mfma_f32_32x32x16_bf16 {v(ACC2,16)}, {v(M+4,4)}, {v(SB,4)}, {v(ACC2,16)}"
    for t in range(3):
        a(f"ds_read2st64_b32 {v(U[0]+2*t,2)}, {v(vO)} offset0:{t*20} offset1:{t*20+5}")
    a("s_waitcnt lgkmcnt(0)")
    dma(U[0], 0)
    a(f"s_cmp_lt_u32 {s(sN)}, 2")
    a("s_cbranch_scc1 K2_PRO1")
    dma(U[0]+2, 1)
    a("s_waitcnt vmcnt(2)")
    a("s_branch K2_PRO2")
    a("K2_PRO1:")
    a("s_waitcnt vmcnt(0)")
    a("K2_PRO2:")
    stamp(a, 7, STB)
    for x in Lreads(0, 0): a(x)
    a("s_waitcnt lgkmcnt(0)")
    for x in G1(Y[0]): a(x)
    a(f"s_cmp_lt_u32 {s(sN)}, 3")
    a("s_cbranch_scc1 K2_PRO3")
    dma(U[0]+4, 0)
    a("K2_PRO3:")
    a("s_nop 7")
    a("s_nop 3")
    a("K2_LOOP:")
    for k in range(4):
        p = k & 1
        y, yp, u, up = Y[p], Y[1-p], U[p], U[1-p]
        l1 = a.label("K2_W"); l2 = a.label("K2_W")
        a(f"s_add_u32 {s(sT0)}, {s(sI)}, 2")
        a(f"s_cmp_lt_u32 {s(sT0)}, {s(sN)}")
        a(f"s_cbranch_scc1 {l1}")
        a("s_waitcnt vmcnt(0)")
        a(f"{l1}:")
        a("s_waitcnt vmcnt(2)")
        for x in Lreads(1-p, k+1): a(x)
        a(f"ds_read2st64_b32 {v(SO,2)}, {v(vO)} offset0:{(k+3)*20} offset1:{(k+3)*20+5}")
        exps = [f"v_exp_f32 {v(u+i)}, {v(y+i)}" for i in range(16)]
        lsa = f"ds_read_b128 {v(SA,4)}, {v(vS)} offset:{k*5120}"
        lsb = f"ds_read_b128 {v(SB,4)}, {v(vS)} offset:{k*5120+1280}"
        if k == 0:
            l3 = a.label("K2_W")
            ins = [G2b, f"s_cmp_eq_u32 {s(sI)}, 0", f"s_cbranch_scc1 {l3}", lsa, lsb, f"{l3}:"]
        else:
            ins = [G2b, lsa, lsb]
        for x in interleave(exps, {2: ins}): a(x)
        for i in range(8):
            a(f"v_pk_mul_f32 {v(up+2*i,2)}, {v(up+2*i,2)}, {v(yp+2*i,2)}")
        a(f"v_mfma_f32_32x32x16_bf16 {v(u,16)}, {v(ONES,4)}, {v(ONES,4)}, {v(u,16)}")
        for i in range(8):
            a(f"v_cvt_pk_bf16_f32 {v(M+i)}, {v(up+2*i)}, {v(up+2*i+1)}")
        l4 = a.label("K2_W"); l5 = a.label("K2_W"); l6 = a.label("K2_W")
        a(f"s_cmp_lt_i32 {s(sTG2)}, {s(sNB2)}")
        a(f"s_cbranch_scc1 {l4}")
        a(f"s_call_b64 {s(sRET,2)}, K2_FLUSH")
        a(f"{l4}:")
        a(f"s_cmp_lt_i32 {s(sTG1)}, {s(sNB1)}")
        a(f"s_cbranch_scc1 {l5}")
        a(f"s_call_b64 {s(sRET,2)}, K2_WEXT")
        a(f"{l5}:")
        a(f"s_add_u32 {s(sT0)}, {s(sI)}, 3")
        a(f"s_cmp_lt_u32 {s(sT0)}, {s(sN)}")
        a("s_waitcnt lgkmcnt(0)")
        a(f"s_cbranch_scc0 {l6}")
        dma(SO, 1-p)
        a(f"{l6}:")
        rcps = [f"v_rcp_f32 {v(u+i)}, {v(u+i)}" for i in range(16)]
        g1 = G1(yp)
        for x in interleave(rcps, {0: g1[0:1], 4: g1[1:2], 8: g1[2:3], 12: [G2a]}): a(x)
        a(f"s_add_u32 {s(sI)}, {s(sI)}, 1")
        a(f"s_add_u32 {s(sTG1)}, {s(sTG1)}, 2")
        a(f"s_add_u32 {s(sTG2)}, {s(sTG2)}, 2")
        a(f"s_cmp_ge_u32 {s(sI)}, {s(sN)}")
        a(f"s_cbranch_scc1 K2_EXIT{k}")
        if k == 3:
            for r in (vT, vX, vO, vS):
                a(f"v_add_u32 {v(r)}, {4*5120}, {v(r)}")
            a("s_branch K2_LOOP")
    for k in range(4):
        p = k & 1
        y, u = Y[p], U[p]
        a(f"K2_EXIT{k}:")
        a(f"ds_read_b128 {v(SA,4)}, {v(vS)} offset:{(k+1)*5120}")
        a(G2b)
        a(f"ds_read_b128 {v(SB,4)}, {v(vS)} offset:{(k+1)*5120+1280}")
        for i in range(8):
            a(f"v_pk_mul_f32 {v(u+2*i,2)}, {v(u+2*i,2)}, {v(y+2*i,2)}")
        for i in range(8):
            a(f"v_cvt_pk_bf16_f32 {v(M+i)}, {v(u+2*i)}, {v(u+2*i+1)}")
        if k < 3:
            a("s_branch K2_EXITC")
    a("K2_EXITC:")
    l4 = a.label("K2_W")
    a(f"s_cmp_lt_i32 {s(sTG2)}, {s(sNB2)}")
    a(f"s_cbranch_scc1 {l4}")
    a(f"s_call_b64 {s(sRET,2)}, K2_FLUSH")
    a(f"{l4}:")
    a("s_waitcnt lgkmcnt(0)")
    a(G2a)
    a(G2b)
    a("s_nop 15")
    a(f"s_call_b64 {s(sRET,2)}, K2_FLUSH")
    a("K2_ROUND_END:")
    a(f"s_add_u32 {s(sT0)}, {s(sRBASE)}, {CAPT}")
    a(f"s_cmp_lt_u32 {s(sT0)}, {s(sB+5)}")
    a("s_cbranch_scc1 K2_NEXTROUND")
    stamp(a, 8, STB)
    WF = 96
    a(f"v_lshlrev_b32 v18, 4, {v(L)}")
    a(f"s_lshl_b32 {s(sT0)}, {s(sCT)}, 14")
    a(f"s_add_u32 {s(sT0)}, {s(sT0)}, {WS_WHF}")
    for sidx in range(16):
        a(f"buffer_load_dwordx4 {v(WF+4*sidx,4)}, v18, {s(R_WS,4)}, {s(sT0)} offen offset:{(sidx%4)*1024}")
        if sidx % 4 == 3 and sidx < 15:
            a(f"s_add_u32 {s(sT0)}, {s(sT0)}, 4096")
    srd(a, R_POS, P_POS, N*6)
    srd(a, R_OUT, P_OUT, 1310000*2)
    a(f"s_mul_i32 {s(sT1)}, s2, 240")
    a("v_lshlrev_b32 v19, 1, v0")
    a(f"buffer_load_ushort v46, v19, {s(R_POS,4)}, {s(sT1)} offen")
    a(f"v_lshrrev_b32 v77, 5, {v(L)}")
    a(f"v_and_b32 v78, 31, {v(L)}")
    for q in range(8):
        a(f"v_lshlrev_b32 {v(48+2*q)}, 16, {v(WXR+q)}")
        a(f"v_and_b32 {v(49+2*q)}, 0xffff0000, {v(WXR+q)}")
    a("v_lshlrev_b32 v47, 2, v78")
    a(f"v_add_u32 v47, {POSACC}, v47")
    for f in range(5):
        a(f"v_mul_f32 {v(64+f)}, v48, {v(SAVED+16*f)}")
        for r in range(1, 16):
            a(f"v_fmac_f32 {v(64+f)}, {v(48+r)}, {v(SAVED+16*f+r)}")
        a(f"ds_add_f32 v47, {v(64+f)} offset:{f*128}")
    a("v_mul_u32_u24 v70, 528, v78")
    a("v_lshl_add_u32 v70, v77, 4, v70")
    a(f"s_lshl_b32 {s(sT0)}, {s(sCT)}, 7")
    a(f"v_add_u32 v70, {s(sT0)}, v70")
    a("v_mul_u32_u24 v71, 272, v78")
    a("v_lshl_add_u32 v72, v77, 3, v71")
    a(f"s_lshl_b32 {s(sT0)}, {s(sCT)}, 6")
    a(f"v_add_u32 v72, {s(sT0)}, v72")
    a("v_lshl_add_u32 v71, v77, 4, v71")
    a(f"s_mul_i32 {s(sT0)}, {s(sPAR)}, {32*272}")
    a(f"v_add_u32 v71, {s(sT0)}, v71")
    a(f"v_add_u32 v73, {s(sT0)}, v72")
    a("v_lshrrev_b32 v74, 4, v0")
    a("v_mul_u32_u24 v74, 272, v74")
    a("v_and_b32 v75, 15, v0")
    a("v_lshl_add_u32 v74, v75, 4, v74")
    a("s_waitcnt lgkmcnt(0)")
    a("s_barrier")
    stamp(a, 9, STB)
    a(f"ds_write_b128 v74, {v(HR,4)} offset:{HBF}")
    a(f"ds_write_b128 v74, {v(HR+4,4)} offset:{HBF+32*272}")
    a("s_mov_b32 exec_lo, 0xff\ns_mov_b32 exec_hi, 0xff")
    a(f"s_cmp_eq_u32 {s(sPAR)}, 0")
    a("s_cbranch_scc1 K2_T4_P0")
    for grp, lab in (((0, 1, 2), None), ((3, 4), "K2_T4_P0")):
        if lab: a(f"{lab}:")
        for f in grp:
            for q in range(4):
                a(f"ds_write_b128 v70, {v(SAVED+16*f+4*q,4)} offset:{MB1+f*4224+q*32}")
        if not lab: a("s_branch K2_T4_DONE")
    a("K2_T4_DONE:")
    a("s_waitcnt lgkmcnt(0)")
    a("s_barrier")
    a(f"s_mov_b32 {s(sT2)}, {NEG_LN2:#x}")
    a(f"s_cmp_eq_u32 {s(sPAR)}, 0")
    a("s_cbranch_scc1 K2_T6_P0")
    for grp, lab in (((3, 4), None), ((0, 1, 2), "K2_T6_P0")):
        if lab: a(f"{lab}:")
        for f in grp:
            for q in range(4):
                a(f"ds_read_b128 {v(48+4*q,4)}, v70 offset:{MB1+f*4224+q*32}")
            for q in range(4):
                a(f"s_waitcnt lgkmcnt({3-q})")
                for r in range(4):
                    a(f"v_add_f32 {v(48+4*q+r)}, {v(48+4*q+r)}, {v(SAVED+16*f+4*q+r)}")
                    a(f"v_mul_f32 {v(48+4*q+r)}, {s(sT2)}, {v(48+4*q+r)}")
                a(f"v_cvt_pk_bf16_f32 {v(80+2*q)}, {v(48+4*q)}, {v(48+4*q+1)}")
                a(f"v_cvt_pk_bf16_f32 {v(81+2*q)}, {v(48+4*q+2)}, {v(48+4*q+3)}")
            for q in range(4):
                a(f"ds_write_b64 v72, {v(80+2*q,2)} offset:{MBF+f*2176+q*16}")
            a("s_waitcnt lgkmcnt(0)")
        if not lab: a("s_branch K2_T6_DONE")
    a("K2_T6_DONE:")
    a("s_mov_b64 exec, -1")
    a("s_barrier")
    stamp(a, 10, STB)
    BF = 160
    for sidx in range(16):
        off = (HBF + sidx*32) if sidx < 8 else (MBF + (sidx-8)*32)
        a(f"ds_read_b128 {v(BF+4*sidx,4)}, v71 offset:{off}")
    for q in range(4):
        a(f"ds_read_b64 {v(48+2*q,2)}, v73 offset:{HBF+q*16}")
    a("v_mul_u32_u24 v64, 0x5556, v0")
    a("v_lshrrev_b32 v64, 16, v64")
    a("v_mul_u32_u24 v65, 3, v64")
    a("v_sub_u32 v65, v0, v65")
    a("v_lshrrev_b32 v66, 3, v64")
    a("v_and_b32 v64, 7, v64")
    a("v_lshl_add_u32 v64, v66, 5, v64")
    a("v_lshl_add_u32 v64, v65, 3, v64")
    a("v_lshlrev_b32 v64, 2, v64")
    a(f"v_add_u32 v64, {POSACC+32}, v64")
    a("ds_read_b32 v64, v64")
    a("s_waitcnt vmcnt(0)")
    for sidx in range(16):
        a(f"s_waitcnt lgkmcnt({min(15, 20-sidx)})")
        c = "0" if sidx == 0 else v(ACC2,16)
        a(f"v_mfma_f32_32x32x16_bf16 {v(ACC2,16)}, {v(WF+4*sidx,4)}, {v(BF+4*sidx,4)}, {c}")
    a("s_waitcnt lgkmcnt(0)")
    a("v_lshlrev_b32 v46, 16, v46")
    a(f"v_fma_f32 v46, v64, {s(sT2)}, v46")
    a("v_cvt_pk_bf16_f32 v46, v46, v46")
    a(f"s_add_u32 {s(sT1)}, {s(sT1)}, 2560000")
    a("v_cmp_gt_u32 vcc, 120, v0")
    a(f"s_and_saveexec_b64 {s(sRET,2)}, vcc")
    a("s_cbranch_execz K2_NOPOS")
    a(f"buffer_store_short v46, v19, {s(R_OUT,4)}, {s(sT1)} offen")
    a("K2_NOPOS:")
    a("s_mov_b64 exec, -1")
    a("v_lshlrev_b32 v70, 8, v78")
    a("v_lshl_add_u32 v70, v77, 3, v70")
    a(f"s_mul_i32 {s(sT0)}, s2, 10240")
    a(f"s_lshl_b32 {s(sT1)}, {s(sPAR)}, 13")
    a(f"s_add_u32 {s(sT0)}, {s(sT0)}, {s(sT1)}")
    a(f"s_lshl_b32 {s(sT1)}, {s(sCT)}, 6")
    a(f"s_add_u32 {s(sT0)}, {s(sT0)}, {s(sT1)}")
    a(f"s_mov_b32 {s(sT2)}, {NEG_LOG2E:#x}")
    a("s_nop 4")
    for r in range(16):
        a(f"v_mul_f32 {v(96+r)}, {s(sT2)}, {v(ACC2+r)}")
    for r in range(16):
        a(f"v_exp_f32 {v(96+r)}, {v(96+r)}")
    for r in range(16):
        a(f"v_add_f32 {v(96+r)}, 1.0, {v(96+r)}")
    for r in range(16):
        a(f"v_rcp_f32 {v(96+r)}, {v(96+r)}")
    for q in range(8):
        a(f"v_lshlrev_b32 {v(112+2*q)}, 16, {v(48+q)}")
        a(f"v_and_b32 {v(113+2*q)}, 0xffff0000, {v(48+q)}")
    for r in range(16):
        a(f"v_fmac_f32 {v(112+r)}, {v(96+r)}, {v(ACC2+r)}")
    for q in range(8):
        a(f"v_cvt_pk_bf16_f32 {v(128+q)}, {v(112+2*q)}, {v(113+2*q)}")
    a(f"s_cmp_eq_u32 {s(sPAR)}, 0")
    a("s_cbranch_scc1 K2_ST")
    a("s_mov_b32 exec_lo, 0xff\ns_mov_b32 exec_hi, 0xff")
    a("K2_ST:")
    for q in range(4):
        a(f"buffer_store_dwordx2 {v(128+2*q,2)}, v70, {s(R_OUT,4)}, {s(sT0)} offen offset:{q*16}")
    stamp(a, 11, STB)
    if asmlib.STAMPS:
        a("s_waitcnt vmcnt(0)")
        stamp(a, 12, STB); stamp(a, 13, STB)
        stamp_rt(a, 14, STB)
        stamp_flush(a, 15, R_WS, 1, 200, sWAVE, STB)
    a("K2_END:")
    a("s_endpgm")

    def bucket_of(tg, dst):
        a(f"s_mov_b32 {s(dst)}, 0")
        for f in range(1, 5):
            a(f"s_cmp_ge_i32 {s(tg)}, {s(sB+f)}")
            a(f"s_addc_u32 {s(dst)}, {s(dst)}, 0")
    a("K2_WEXT:")
    bucket_of(sTG1, sT0)
    for f in range(5):
        if f < 4:
            a(f"s_cmp_lg_u32 {s(sT0)}, {f}")
            a(f"s_cbranch_scc1 K2_WEXT{f+1}")
        a(f"v_mov_b32 {v(WEXT)}, {v(APS+2*f)}")
        a(f"v_mov_b32 {v(WEXT+1)}, {v(APS+2*f+1)}")
        if f < 4:
            a(f"s_mov_b32 {s(sNB1)}, {s(sB+f+1)}")
        else:
            a(f"s_mov_b32 {s(sNB1)}, 0x7fffffff")
        a(f"s_setpc_b64 {s(sRET,2)}")
        if f < 4:
            a(f"K2_WEXT{f+1}:")
    a("K2_FLUSH:")
    for f in range(5):
        if f < 4:
            a(f"s_cmp_lg_u32 {s(sF2)}, {f}")
            a(f"s_cbranch_scc1 K2_FL{f+1}")
        for r in range(16):
            a(f"v_add_f32 {v(SAVED+16*f+r)}, {v(SAVED+16*f+r)}, {v(ACC2+r)}")
        if f < 4:
            a("s_branch K2_FLZ")
            a(f"K2_FL{f+1}:")
    a("K2_FLZ:")
    for r in range(16):
        a(f"v_mov_b32 {v(ACC2+r)}, 0")
    bucket_of(sTG2, sF2)
    a(f"s_mov_b32 {s(sNB2)}, 0x7fffffff")
    for f in range(3, -1, -1):
        a(f"s_cmp_eq_u32 {s(sF2)}, {f}")
        a(f"s_cselect_b32 {s(sNB2)}, {s(sB+f+1)}, {s(sNB2)}")
    a(f"s_setpc_b64 {s(sRET,2)}")
    a("K2_MOREBATCH:")
    a(f"v_subrev_u32 {v(vCNT)}, 32, {v(vCNT)}")
    a(f"v_add_u32 {v(vIDX)}, 32, {v(vIDX)}")
    a(f"v_add_u32 {v(vRA)}, 512, {v(vRA)}")
    a(f"v_add_u32 {v(vRB)}, 256, {v(vRB)}")
    a(f"s_add_u32 {s(sJB)}, {s(sJB)}, 32")
    a("s_waitcnt lgkmcnt(0)")
    issue_records(a, "more")
    a("s_branch K2_BATCH")
    a("K2_NEXTROUND:")
    a(f"s_mov_b32 {s(sRBASE)}, {s(sT0)}")
    a(f"v_add_u32 {v(vCNT)}, {s(sJB)}, {v(vCNT)}")
    a(f"v_subrev_u32 {v(vIDX)}, {s(sJB)}, {v(vIDX)}")
    a(f"s_lshl_b32 {s(sT0)}, {s(sJB)}, 4")
    a(f"v_subrev_u32 {v(vRA)}, {s(sT0)}, {v(vRA)}")
    a(f"s_lshl_b32 {s(sT0)}, {s(sJB)}, 3")
    a(f"v_subrev_u32 {v(vRB)}, {s(sT0)}, {v(vRB)}")
    a(f"s_mov_b32 {s(sJB)}, 0")
    a(f"s_max_u32 {s(sT0)}, {s(sN)}, 1")
    a(f"s_sub_u32 {s(sT0)}, {s(sT0)}, 1")
    a(f"s_lshr_b32 {s(sT0)}, {s(sT0)}, 2")
    a(f"s_mul_i32 {s(sT0)}, {s(sT0)}, {4*5120}")
    for r in (vT, vX, vO, vS):
        a(f"v_subrev_u32 {v(r)}, {s(sT0)}, {v(r)}")
    a("s_waitcnt vmcnt(0) lgkmcnt(0)")
    a("s_barrier")
    for r in range(4):
        a(f"v_mov_b32 {v(48+r)}, 0")
    a("v_lshlrev_b32 v52, 4, v0")
    a(f"v_add_u32 v52, {IMG}, v52")
    zero_img(a, 52, 48)
    issue_records(a, "round")
    a("s_waitcnt lgkmcnt(0)")
    a("s_barrier")
    a("s_branch K2_BATCH")
```

```python
import sys
import asmlib
from asmlib import Asm, v, s, interleave, stamp, stamp_rt, stamp_flush

NAME = "gather_scatter__cheap_equivariant_egnn__graph"
N = 10000; E = 320000
NCH = 125; CH = 2560
NG = 105
K1_GRID = NCH + NG + 1
WS_BP = 0
WS_AP = 0x300000
WS_OFFS = 0x600000
WS_REC = 0x700000
REC_STRIDE = CH * 24
WS_WHF = 0xF00000
WS_SIZE = 0x10000000
NEG_LOG2E = 0xbfb8aa3b
NEG_LN2 = 0xbf317218

K1_POS = 0
K1_CNT = 60416
K1_WT = 65536
K1_ST = 66560
K1_LDS = K1_ST + REC_STRIDE
K1_W = 0
K1_H = 65536

def srd(a, d, base, nbytes):
    a(f"s_mov_b32 {s(d)}, {s(base)}")
    a(f"s_and_b32 {s(d+1)}, {s(base+1)}, 0xffff")
    a(f"s_mov_b32 {s(d+2)}, {nbytes}")
    a(f"s_mov_b32 {s(d+3)}, 0x00020000")

def dpp_scan(a, r):
    for sh in (1, 2, 4, 8):
        a("s_nop 1")
        a(f"v_add_u32_dpp {v(r)}, {v(r)}, {v(r)} row_shr:{sh} row_mask:0xf bank_mask:0xf bound_ctrl:0")
    a("s_nop 1")
    a(f"v_add_u32_dpp {v(r)}, {v(r)}, {v(r)} row_bcast:15 row_mask:0xa bank_mask:0xf")
    a("s_nop 1")
    a(f"v_add_u32_dpp {v(r)}, {v(r)}, {v(r)} row_bcast:31 row_mask:0xc bank_mask:0xf")

def gemm_end(a, R_WS):
    stamp(a, 5)
    if asmlib.STAMPS: a("s_waitcnt vmcnt(0)")
    stamp(a, 6)
    for i in range(7, 11): stamp(a, i)
    stamp_rt(a, 11)
    stamp_flush(a, 12, R_WS, 0, 200, 3)

def gen_k1(a):
    P_H, P_POS, P_EA, P_SRC, P_DST, P_WE, P_WX, P_WH = 16, 18, 20, 22, 24, 26, 28, 30
    P_WS = 34
    R_DST, R_SRC, R_EA, R_POS, R_WS = 36, 40, 44, 48, 52
    a(".p2align 8")
    a(".type prep_kernel,@function")
    a("prep_kernel:")
    a(f"s_cmp_ge_u32 s2, {K1_GRID}")
    a("s_cbranch_scc1 K1_END")
    stamp_rt(a, 0)
    stamp(a, 1)
    a("s_load_dwordx16 s[16:31], s[0:1], 0")
    a("s_load_dwordx2 s[34:35], s[0:1], 80")
    a("v_lshrrev_b32 v1, 6, v0")
    a("v_and_b32 v2, 63, v0")
    a("v_lshlrev_b32 v3, 4, v0")
    a("v_readfirstlane_b32 s3, v1")
    a(f"s_cmp_ge_u32 s2, {NCH}")
    a("s_cbranch_scc1 K1_GEMM")
    a.c("zero counters (threads < 320 => waves 0..4)")
    a("v_mov_b32 v92, 0\nv_mov_b32 v93, 0\nv_mov_b32 v94, 0\nv_mov_b32 v95, 0")
    a("s_cmp_ge_u32 s3, 5")
    a("s_cbranch_scc1 K1B_NOZ")
    a(f"ds_write_b128 v3, v[92:95] offset:{K1_CNT}")
    a("K1B_NOZ:")
    a("v_lshlrev_b32 v4, 2, v0")
    a("v_lshlrev_b32 v5, 5, v0")
    a("v_lshlrev_b32 v6, 3, v0")
    a("v_lshlrev_b32 v7, 4, v2")
    a(f"s_mul_i32 s4, s2, {CH*4}")
    a(f"s_add_u32 s5, s4, 8192")
    a(f"s_lshl_b32 s6, s4, 1")
    a(f"s_add_u32 s7, s6, 16384")
    a("s_waitcnt lgkmcnt(0)")
    srd(a, R_DST, P_DST, E*4)
    srd(a, R_SRC, P_SRC, E*4)
    srd(a, R_EA, P_EA, E*8)
    srd(a, R_POS, P_POS, N*6)
    srd(a, R_WS, P_WS, WS_SIZE)
    a(f"buffer_load_dwordx4 v[8:11], v3, {s(R_DST,4)}, s4 offen")
    a(f"buffer_load_dword v12, v4, {s(R_DST,4)}, s5 offen")
    a(f"buffer_load_dwordx4 v[16:19], v3, {s(R_SRC,4)}, s4 offen")
    a(f"buffer_load_dword v20, v4, {s(R_SRC,4)}, s5 offen")
    a.c("pos table DMA")
    a("s_lshl_b32 s8, s3, 10")
    for i in range(8):
        if i == 7:
            a("s_cmp_ge_u32 s3, 3")
            a("s_cbranch_scc1 K1B_NODMA")
        a("s_mov_b32 m0, s8")
        a("s_nop 0")
        a(f"buffer_load_dwordx4 v7, {s(R_POS,4)}, s8 offen lds")
        if i < 7:
            a("s_add_u32 s8, s8, 8192")
    a("K1B_NODMA:")
    a(f"buffer_load_dwordx4 v[24:27], v5, {s(R_EA,4)}, s6 offen")
    a(f"buffer_load_dwordx4 v[28:31], v5, {s(R_EA,4)}, s6 offen offset:16")
    a(f"buffer_load_dwordx2 v[32:33], v6, {s(R_EA,4)}, s7 offen")
    stamp(a, 2)
    a("s_barrier")
    a("v_mov_b32 v46, 1")
    a("s_waitcnt vmcnt(12)")
    stamp(a, 3)
    DST = [8, 9, 10, 11, 12]; SRC = [16, 17, 18, 19, 20]
    EA = [24, 26, 28, 30, 32]
    for i in range(5):
        a(f"v_lshrrev_b32 {v(34+i)}, 1, {v(DST[i])}")
        a(f"v_and_b32 {v(34+i)}, 0xfffffffc, {v(34+i)}")
        a(f"ds_add_rtn_u32 {v(40+i)}, {v(34+i)}, v46 offset:{K1_CNT}")
    for i in range(5):
        a(f"v_mul_u32_u24 {v(90+i)}, 6, {v(DST[i])}")
        a(f"v_and_b32 {v(90+i)}, 0xfffffffc, {v(90+i)}")
    a("s_waitcnt vmcnt(3)")
    stamp(a, 4)
    for i in range(5):
        a(f"v_mul_u32_u24 {v(95+i)}, 6, {v(SRC[i])}")
        a(f"v_and_b32 {v(95+i)}, 0xfffffffc, {v(95+i)}")
    a("s_waitcnt lgkmcnt(0)")
    a("s_barrier")
    stamp(a, 5)
    for i in range(5):
        a(f"ds_read2_b32 {v(48+4*i,2)}, {v(90+i)} offset0:0 offset1:1")
        a(f"ds_read2_b32 {v(50+4*i,2)}, {v(95+i)} offset0:0 offset1:1")
    a.c("scan part 1 (waves 0..4)")
    a("s_cmp_ge_u32 s3, 5")
    a("s_cbranch_scc1 K1B_NOSCAN1")
    a(f"ds_read_b128 v[106:109], v3 offset:{K1_CNT}")
    a("s_waitcnt lgkmcnt(0)")
    a("v_add_u32 v110, v106, v107")
    a("v_add_u32 v111, v110, v108")
    a("v_add_u32 v112, v111, v109")
    a("v_mov_b32 v113, v112")
    dpp_scan(a, 113)
    a("s_lshl_b32 s9, s3, 2")
    a(f"s_add_u32 s9, s9, {K1_WT}")
    a("v_mov_b32 v114, s9")
    a("v_cmp_eq_u32 vcc, 63, v2")
    a("s_and_saveexec_b64 s[10:11], vcc")
    a("ds_write_b32 v114, v113")
    a("s_mov_b64 exec, s[10:11]")
    a("v_sub_u32 v113, v113, v112")
    a("K1B_NOSCAN1:")
    a("s_waitcnt lgkmcnt(0)")
    a("s_barrier")
    a("s_cmp_ge_u32 s3, 5")
    a("s_cbranch_scc1 K1B_NOSCAN2")
    a(f"v_mov_b32 v114, {K1_WT}")
    a("ds_read_b128 v[116:119], v114")
    a("s_waitcnt lgkmcnt(0)")
    a("v_readfirstlane_b32 s12, v116\nv_readfirstlane_b32 s13, v117\nv_readfirstlane_b32 s14, v118\nv_readfirstlane_b32 s15, v119")
    a("s_nop 3")
    a("s_mov_b32 s9, 0")
    for k in range(4):
        a(f"s_cmp_gt_u32 s3, {k}")
        a(f"s_cselect_b32 s10, s{12+k}, 0")
        a("s_add_u32 s9, s9, s10")
    a("v_add_u32 v116, s9, v113")
    a("v_add_u32 v117, v116, v106")
    a("v_add_u32 v118, v116, v110")
    a("v_add_u32 v119, v116, v111")
    a(f"ds_write_b128 v3, v[116:119] offset:{K1_CNT}")
    a(f"s_mul_i32 s9, s2, 5120")
    a(f"s_add_u32 s9, s9, {WS_OFFS}")
    a(f"buffer_store_dwordx4 v[116:119], v3, {s(R_WS,4)}, s9 offen")
    a("K1B_NOSCAN2:")
    stamp(a, 6)
    a.c("diff / dist2")
    for i in range(5):
        pd, ps = 48+4*i, 50+4*i
        XA, RB = 70+2*i, 80+2*i
        t = 120
        a(f"v_lshlrev_b32 {v(t)}, 4, {v(DST[i])}")
        a(f"v_lshlrev_b32 {v(t+1)}, 4, {v(SRC[i])}")
        a(f"v_and_b32 {v(t)}, 16, {v(t)}")
        a(f"v_and_b32 {v(t+1)}, 16, {v(t+1)}")
        a(f"v_lshrrev_b64 {v(pd,2)}, {v(t)}, {v(pd,2)}")
        a(f"v_lshrrev_b64 {v(ps,2)}, {v(t+1)}, {v(ps,2)}")
        a(f"v_lshlrev_b32 {v(t)}, 16, {v(pd)}")
        a(f"v_and_b32 {v(t+1)}, 0xffff0000, {v(pd)}")
        a(f"v_lshlrev_b32 {v(t+2)}, 16, {v(pd+1)}")
        a(f"v_lshlrev_b32 {v(t+3)}, 16, {v(ps)}")
        a(f"v_and_b32 {v(t+4)}, 0xffff0000, {v(ps)}")
        a(f"v_lshlrev_b32 {v(t+5)}, 16, {v(ps+1)}")
        a(f"v_sub_f32 {v(t)}, {v(t)}, {v(t+3)}")
        a(f"v_sub_f32 {v(t+1)}, {v(t+1)}, {v(t+4)}")
        a(f"v_sub_f32 {v(t+2)}, {v(t+2)}, {v(t+5)}")
        a(f"v_cvt_pk_bf16_f32 {v(RB)}, {v(t)}, {v(t+1)}")
        a(f"v_cvt_pk_bf16_f32 {v(t+5)}, {v(t+2)}, 0")
        a(f"v_lshlrev_b32 {v(t)}, 16, {v(RB)}")
        a(f"v_and_b32 {v(t+1)}, 0xffff0000, {v(RB)}")
        a(f"v_lshlrev_b32 {v(t+2)}, 16, {v(t+5)}")
        a(f"v_lshl_or_b32 {v(RB+1)}, {v(DST[i])}, 16, {v(t+5)}")
        a(f"v_mul_f32 {v(t)}, {v(t)}, {v(t)}")
        a(f"v_mul_f32 {v(t+1)}, {v(t+1)}, {v(t+1)}")
        a(f"v_mul_f32 {v(t+2)}, {v(t+2)}, {v(t+2)}")
        a(f"v_cvt_pk_bf16_f32 {v(t+3)}, {v(t)}, {v(t+1)}")
        a(f"v_cvt_pk_bf16_f32 {v(t+4)}, {v(t+2)}, 0")
        a(f"v_lshlrev_b32 {v(t)}, 16, {v(t+3)}")
        a(f"v_and_b32 {v(t+1)}, 0xffff0000, {v(t+3)}")
        a(f"v_lshlrev_b32 {v(t+2)}, 16, {v(t+4)}")
        a(f"v_add_f32 {v(t)}, {v(t)}, {v(t+1)}")
        a(f"v_add_f32 {v(t)}, {v(t)}, {v(t+2)}")
        a(f"v_cvt_pk_bf16_f32 {v(XA)}, {v(t)}, {v(t)}")
        a(f"v_lshlrev_b32 {v(XA+1)}, 8, {v(SRC[i])}")
    a("s_waitcnt lgkmcnt(0)")
    a("s_barrier")
    stamp(a, 7)
    for i in range(5):
        a(f"ds_read_b32 {v(90+i)}, {v(34+i)} offset:{K1_CNT}")
    a("s_waitcnt vmcnt(0) lgkmcnt(0)")
    a(f"v_mov_b32 v100, {K1_ST}")
    a(f"v_mov_b32 v101, {K1_ST + CH*16}")
    for i in range(5):
        a(f"v_add_u32 {v(90+i)}, {v(90+i)}, {v(40+i)}")
        a(f"v_lshl_add_u32 {v(95+i)}, {v(90+i)}, 4, v100")
        a(f"v_lshl_add_u32 {v(90+i)}, {v(90+i)}, 3, v101")
        a(f"ds_write2_b64 {v(95+i)}, {v(EA[i],2)}, {v(70+2*i,2)} offset0:0 offset1:1")
        a(f"ds_write_b64 {v(90+i)}, {v(80+2*i,2)}")
    a("v_add_u32 v100, v100, v3")
    a(f"s_mul_i32 s9, s2, {REC_STRIDE}")
    a(f"s_add_u32 s9, s9, {WS_REC}")
    a("s_waitcnt lgkmcnt(0)")
    a("s_barrier")
    stamp(a, 8)
    for i in range(7):
        a(f"ds_read_b128 {v(8+4*i,4)}, v100 offset:{i*8192}")
    a("s_cmp_ge_u32 s3, 4")
    a("s_cbranch_scc1 K1B_NO8")
    a(f"ds_read_b128 {v(36,4)}, v100 offset:{7*8192}")
    a("s_add_u32 s10, s9, 57344")
    a("s_waitcnt lgkmcnt(0)")
    a(f"buffer_store_dwordx4 {v(36,4)}, v3, {s(R_WS,4)}, s10 offen")
    a("K1B_NO8:")
    for i in range(7):
        a(f"s_waitcnt lgkmcnt({6-i})")
        a(f"buffer_store_dwordx4 {v(8+4*i,4)}, v3, {s(R_WS,4)}, s9 offen")
        if i < 6:
            a("s_add_u32 s9, s9, 8192")
    stamp(a, 9)
    if asmlib.STAMPS: a("s_waitcnt vmcnt(0)")
    stamp(a, 10)
    stamp_rt(a, 11)
    stamp_flush(a, 12, R_WS, 0, 200, 3)
    a("s_endpgm")

    R_W, R_H = 36, 40
    a("K1_GEMM:")
    a(f"s_sub_u32 s4, s2, {NCH}")
    a("v_lshrrev_b32 v4, 4, v2")
    a("v_and_b32 v5, 15, v2")
    a("v_lshlrev_b32 v6, 2, v4")
    a("v_xor_b32 v6, v6, v5")
    a("v_lshlrev_b32 v6, 4, v6")
    a("v_lshl_add_u32 v6, v4, 8, v6")
    a("v_xor_b32 v7, v4, v5")
    a("v_lshlrev_b32 v7, 4, v7")
    a("v_lshl_add_u32 v7, v4, 8, v7")
    a("s_waitcnt lgkmcnt(0)")
    a(f"s_cmp_eq_u32 s4, {NG}")
    a(f"s_cselect_b32 s{R_W}, s{P_WH}, s{P_WE}")
    a(f"s_cselect_b32 s{R_W+1}, s{P_WH+1}, s{P_WE+1}")
    a(f"s_and_b32 s{R_W+1}, s{R_W+1}, 0xffff")
    a(f"s_mov_b32 s{R_W+2}, 65536")
    a(f"s_mov_b32 s{R_W+3}, 0x00020000")
    srd(a, R_H, P_H, N*256)
    srd(a, R_WS, P_WS, WS_SIZE)
    a("s_lshl_b32 s8, s3, 13")
    for i in range(8):
        a("s_mov_b32 m0, s8")
        a("s_nop 0")
        a(f"buffer_load_dwordx4 v6, {s(R_W,4)}, s8 offen lds")
        if i < 7:
            a("s_add_u32 s8, s8, 1024")
    a(f"s_cmp_eq_u32 s4, {NG}")
    a("s_cbranch_scc1 K1G_NOH")
    a("s_mul_i32 s9, s3, 3")
    a("s_mul_i32 s10, s4, 24576")
    for i in range(3):
        a("s_and_b32 s11, s9, 3")
        a("s_lshl_b32 s11, s11, 6")
        a("v_xor_b32 v8, s11, v7")
        a("s_lshl_b32 s11, s9, 10")
        a(f"s_add_u32 m0, s11, {K1_H}")
        a("s_add_u32 s11, s11, s10")
        a(f"buffer_load_dwordx4 v8, {s(R_H,4)}, s11 offen lds")
        if i < 2:
            a("s_add_u32 s9, s9, 1")
    a("K1G_NOH:")
    stamp(a, 2)
    a.c("W tr-read address")
    a("s_and_b32 s12, s3, 3")
    a("s_lshr_b32 s13, s3, 2")
    a("v_lshrrev_b32 v9, 2, v5")
    a("v_and_b32 v10, 3, v5")
    a("v_lshrrev_b32 v11, 5, v2")
    a("v_and_b32 v12, 1, v4")
    a("v_lshl_add_u32 v13, v11, 3, v9")
    a("v_lshlrev_b32 v13, 8, v13")
    a("v_xor_b32 v14, s12, v9")
    a("v_lshl_add_u32 v13, v14, 6, v13")
    a("v_lshl_add_u32 v13, v12, 5, v13")
    a("v_lshl_add_u32 v13, v10, 3, v13")
    a("s_lshl_b32 s14, s13, 15")
    a("v_add_u32 v13, s14, v13")
    a.c("H frag addresses")
    a("v_and_b32 v14, 31, v2")
    a("v_xor_b32 v15, v11, v5")
    a("v_lshlrev_b32 v15, 4, v15")
    a("v_lshl_add_u32 v15, v14, 8, v15")
    a(f"v_add_u32 v15, {K1_H}, v15")
    for sidx in range(8):
        a(f"v_xor_b32 {v(16+sidx)}, {sidx*32}, v15")
    a("s_waitcnt vmcnt(0)")
    stamp(a, 3)
    a("s_barrier")
    stamp(a, 4)
    WF = 32
    for sidx in range(8):
        for u in range(2):
            a(f"ds_read_b64_tr_b16 {v(WF+4*sidx+2*u,2)}, v13 offset:{(16*sidx+4*u)*256}")
    a(f"s_cmp_eq_u32 s4, {NG}")
    a("s_cbranch_scc1 K1_WHF")
    HF = 64
    ACC = 160
    for rt in range(3):
        for sidx in range(8):
            a(f"ds_read_b128 {v(HF+32*rt+4*sidx,4)}, {v(16+sidx)} offset:{rt*8192}")
    a(f"s_mov_b32 s15, {NEG_LOG2E:#x}")
    a("s_cmp_ge_u32 s3, 4")
    a("s_cbranch_scc1 K1G_B")
    a("v_lshlrev_b32 v24, 3, v2")
    a("s_mul_i32 s9, s4, 24576")
    a("s_lshl_b32 s10, s12, 9")
    a("s_add_u32 s9, s9, s10")
    a(f"s_add_u32 s9, s9, {WS_AP}")
    for rt in range(3):
        a(f"s_waitcnt lgkmcnt({min(15,(2-rt)*8)})")
        for sidx in range(8):
            c = "0" if sidx == 0 else v(ACC+16*rt,16)
            a(f"v_mfma_f32_32x32x16_bf16 {v(ACC+16*rt,16)}, {v(HF+32*rt+4*sidx,4)}, {v(WF+4*sidx,4)}, {c}")
    for rt in range(3):
        if rt == 2:
            a("s_nop 7")
        for r in range(16):
            a(f"v_mul_f32 {v(ACC+16*rt+r)}, s15, {v(ACC+16*rt+r)}")
        for r in range(8):
            a(f"v_cvt_pk_bf16_f32 {v(HF+8*rt+r)}, {v(ACC+16*rt+2*r)}, {v(ACC+16*rt+2*r+1)}")
        for q in range(4):
            if q % 2 == 0:
                a(f"s_add_u32 s10, s9, {(rt*4+q)*2048}")
            a(f"buffer_store_dwordx2 {v(HF+8*rt+2*q,2)}, v24, {s(R_WS,4)}, s10 offen offset:{(q%2)*2048}")
    gemm_end(a, R_WS)
    a("s_endpgm")
    a("K1G_B:")
    a("v_lshlrev_b32 v24, 8, v14")
    a("v_lshl_add_u32 v24, v11, 5, v24")
    a("s_mul_i32 s9, s4, 24576")
    a("s_lshl_b32 s10, s12, 6")
    a("s_add_u32 s9, s9, s10")
    if WS_BP:
        a(f"s_add_u32 s9, s9, {WS_BP}")
    for rt in range(3):
        a(f"s_waitcnt lgkmcnt({min(15,(2-rt)*8)})")
        for sidx in range(8):
            c = "0" if sidx == 0 else v(ACC+16*rt,16)
            a(f"v_mfma_f32_32x32x16_bf16 {v(ACC+16*rt,16)}, {v(WF+4*sidx,4)}, {v(HF+32*rt+4*sidx,4)}, {c}")
    for rt in range(3):
        if rt == 2:
            a("s_nop 7")
        for r in range(16):
            a(f"v_mul_f32 {v(ACC+16*rt+r)}, s15, {v(ACC+16*rt+r)}")
        for r in range(8):
            a(f"v_cvt_pk_bf16_f32 {v(HF+8*rt+r)}, {v(ACC+16*rt+2*r)}, {v(ACC+16*rt+2*r+1)}")
        a(f"s_add_u32 s10, s9, {rt*8192}")
        a(f"buffer_store_dwordx4 {v(HF+8*rt,4)}, v24, {s(R_WS,4)}, s10 offen")
        a(f"buffer_store_dwordx4 {v(HF+8*rt+4,4)}, v24, {s(R_WS,4)}, s10 offen offset:16")
    gemm_end(a, R_WS)
    a("s_endpgm")
    a("K1_WHF:")
    a("v_lshlrev_b32 v24, 4, v2")
    a("s_lshl_b32 s9, s12, 14")
    a("s_lshl_b32 s10, s13, 13")
    a("s_add_u32 s9, s9, s10")
    a(f"s_add_u32 s9, s9, {WS_WHF}")
    a("s_waitcnt lgkmcnt(0)")
    for sidx in range(8):
        a(f"buffer_store_dwordx4 {v(WF+4*sidx,4)}, v24, {s(R_WS,4)}, s9 offen offset:{(sidx%4)*1024}")
        if sidx == 3:
            a("s_add_u32 s9, s9, 4096")
    a("K1_END:")
    a("s_endpgm")

def descriptor(a, name, vgpr, sgpr):
    acc = (vgpr + 3) // 4 * 4
    a(".p2align 6")
    a(f".amdhsa_kernel {name}")
    a.lines.append(f"  .amdhsa_next_free_vgpr {vgpr}")
    a.lines.append(f"  .amdhsa_next_free_sgpr {sgpr}")
    a.lines.append(f"  .amdhsa_accum_offset {acc}")
    a.lines.append("  .amdhsa_group_segment_fixed_size 0")
    a.lines.append("  .amdhsa_kernarg_size 88")
    a.lines.append("  .amdhsa_user_sgpr_count 2")
    a.lines.append("  .amdhsa_user_sgpr_kernarg_segment_ptr 1")
    a.lines.append("  .amdhsa_system_sgpr_workgroup_id_x 1")
    a.lines.append("  .amdhsa_float_denorm_mode_32 3")
    a(".end_amdhsa_kernel")

def main(out_path, with_k2=True):
    import gen_k2
    a = Asm()
    hdr = open("cdna_kernels/%s.s.ref" % NAME).read().split("\n")
    for ln in hdr:
        if ln.startswith(";") and "@launch" not in ln and "Override" not in ln and "grid=ceil" not in ln:
            a.lines.append(ln)
    a.lines.append(f"; @launch kernel=prep_kernel grid=({K1_GRID},1,1) block=(512,1,1) lds={K1_LDS}")
    if with_k2:
        a.lines.append(f"; @launch kernel={NAME}_kernel grid=({gen_k2.K2_GRID},1,1) block=(512,1,1) lds={gen_k2.K2_LDS}")
    a('.amdgcn_target "amdgcn-amd-amdhsa--gfx950"')
    a(".text")
    a(".globl prep_kernel")
    gen_k1(a)
    if with_k2:
        a(f".globl {NAME}_kernel")
        gen_k2.gen_k2(a)
    a('.section .rodata,"a"')
    descriptor(a, "prep_kernel", 208, 96)
    if with_k2:
        descriptor(a, f"{NAME}_kernel", gen_k2.K2_VGPR, gen_k2.K2_SGPR)
    open(out_path, "w").write(a.text())

if __name__ == "__main__":
    if "--stamps" in sys.argv: asmlib.STAMPS = True
    out = sys.argv[1] if len(sys.argv) > 1 else f"cdna_kernels/{NAME}.s"
    main(out, with_k2=("--nok2" not in sys.argv))
```

```python
import asmlib
from asmlib import Asm, v, s, interleave, stamp, stamp_rt, stamp_flush

NAME = "gather_scatter__cheap_equivariant_egnn__graph"
N = 10000; E = 320000
NCH = 125; CH = 2560
WS_BP = 0
WS_AP = 0x300000
WS_OFFS = 0x600000
WS_REC = 0x700000
REC_STRIDE = CH * 24
WS_WHF = 0xF00000
WS_SIZE = 0x10000000
NEG_LOG2E = 0xbfb8aa3b
NEG_LN2 = 0xbf317218

import os
PF = int(os.environ.get("PF","1"))
PFSH = int(os.environ.get("PFSH","6"))
NODMA = int(os.environ.get("NODMA","0"))
NOLDS = int(os.environ.get("NOLDS","0"))
NOBR = int(os.environ.get("NOBR","0"))
PFN = (82688 + (512<<PFSH) - 1)//(512<<PFSH)
K2_GRID = 250
CAPT = 48
CAPS = CAPT * 32
GB = 0
IMG = 32768
IMG_BYTES = CAPT * 2560
DELTA = IMG + IMG_BYTES
TOT = DELTA + 4096
POSACC = TOT + 64
K2_LDS = POSACC + 640
MB1 = 0
MBF = 24576
HBF = 45056
K2_VGPR = 256
K2_SGPR = 102

vLANE = 1
vA0, vA1, vT, vX, vO, vS, vK = 2, 3, 4, 5, 6, 7, 8
vRA, vRB, vCNT, vIDX, vDB = 9, 10, 11, 12, 13
SO = 14; VOFF = 16
ONES = 20; IDENT = 24; WEXT = 32; APS = 36
AF = 48; XE = 56; SA = 60; SB = 64; M = 68
ACC2 = 80
Y = [96, 112]; U = [128, 144]
SAVED = 160
WXR = 240; HR = 248
sWAVE, sCT, sPAR = 3, 4, 5
P_H, P_POS, P_EA, P_SRC, P_DST, P_WE, P_WX, P_WH, P_OUT, P_WS = 16, 18, 20, 22, 24, 26, 28, 30, 32, 34
R_WS, R_H, R_OUT, R_WE, R_WX, R_POS, R_OFFS = 36, 40, 44, 48, 52, 56, 60
sB = 6
sI, sN, sTG1, sTG2, sNB1, sNB2, sF2 = 12, 13, 14, 15, 20, 21, 22
sRET = 24
sM0A = 23
sRBASE = 96
sJB = 97
sT0, sT1, sT2 = 98, 99, 100
sB40 = 101
STB = 64

def srd(a, d, base, nbytes):
    a(f"s_mov_b32 {s(d)}, {s(base)}")
    a(f"s_and_b32 {s(d+1)}, {s(base+1)}, 0xffff")
    a(f"s_mov_b32 {s(d+2)}, {nbytes}")
    a(f"s_mov_b32 {s(d+3)}, 0x00020000")

RECA = lambda j: 96 + 4*j
RECB = lambda j: 128 + 2*j

def issue_records(a, tag):
    done = a.label("K2_ISS_DONE")
    for j in range(8):
        a(f"v_cmpx_lt_i32 vcc, {4*j}, {v(vCNT)}")
        a(f"s_cbranch_execz {done}")
        a(f"buffer_load_dwordx4 {v(RECA(j),4)}, {v(vRA)}, {s(R_WS,4)}, 0 offen offset:{64*j}")
        a(f"buffer_load_dwordx2 {v(RECB(j),2)}, {v(vRB)}, {s(R_WS,4)}, 0 offen offset:{32*j}")
    a(f"{done}:")
    a("s_mov_b64 exec, -1")

def zero_img(a, vaddr, z):
    assert IMG_BYTES % 8192 == 0
    n = IMG_BYTES // 8192
    for i in range(n):
        if i == 8:
            a(f"v_add_u32 {v(vaddr)}, 65536, {v(vaddr)}")
        a(f"ds_write_b128 {v(vaddr)}, {v(z,4)} offset:{(i%8)*8192}")

def gen_k2(a):
    a(".p2align 8")
    a(f".type {NAME}_kernel,@function")
    a(f"{NAME}_kernel:")
    a(f"s_cmp_ge_u32 s2, {K2_GRID}")
    a("s_cbranch_scc1 K2_END")
    stamp_rt(a, 0, STB)
    stamp(a, 1, STB)
    a("s_load_dwordx16 s[16:31], s[0:1], 0")
    a("s_load_dwordx2 s[32:33], s[0:1], 64")
    a("s_load_dwordx2 s[34:35], s[0:1], 80")
    a("v_lshrrev_b32 v18, 6, v0")
    a(f"v_and_b32 {v(vLANE)}, 63, v0")
    a("v_lshrrev_b32 v19, 2, v0")
    a(f"v_readfirstlane_b32 {s(sWAVE)}, v18")
    a("v_and_b32 v46, 3, v0")
    a("v_mul_u32_u24 v47, 5120, v19")
    a("v_lshl_add_u32 v76, v46, 2, v47")
    a(f"s_mul_i32 {s(sT0)}, s2, 20")
    a(f"s_and_b32 {s(sCT)}, {s(sWAVE)}, 3")
    a(f"s_lshr_b32 {s(sPAR)}, {s(sWAVE)}, 2")
    a("s_waitcnt lgkmcnt(0)")
    a(f"s_add_u32 {s(R_OFFS)}, {s(P_WS)}, {WS_OFFS}")
    a(f"s_addc_u32 {s(R_OFFS+1)}, {s(P_WS+1)}, 0")
    a(f"s_and_b32 {s(R_OFFS+1)}, {s(R_OFFS+1)}, 0xffff")
    a(f"s_mov_b32 {s(R_OFFS+2)}, {NCH*5120}")
    a(f"s_mov_b32 {s(R_OFFS+3)}, 0x00020000")
    a(f"buffer_load_dword v144, v47, {s(R_OFFS,4)}, {s(sT0)} offen")
    a(f"buffer_load_dwordx2 v[148:149], v47, {s(R_OFFS,4)}, {s(sT0)} offen offset:16")
    a(f"buffer_load_dwordx2 v[146:147], v76, {s(R_OFFS,4)}, {s(sT0)} offen")
    srd(a, R_WS, P_WS, WS_SIZE)
    srd(a, R_WE, P_WE, 261*256)
    srd(a, R_H, P_H, N*256)
    srd(a, R_WX, P_WX, 256)
    a(f"v_lshrrev_b32 v77, 5, {v(vLANE)}")
    a(f"v_and_b32 v78, 31, {v(vLANE)}")
    a(f"v_lshlrev_b32 v79, 3, {v(vLANE)}")
    a(f"s_mul_i32 {s(sT0)}, s2, 10240")
    a(f"s_lshl_b32 {s(sT1)}, {s(sCT)}, 9")
    a(f"s_add_u32 {s(sT1)}, {s(sT1)}, {s(sT0)}")
    a(f"s_add_u32 {s(sT1)}, {s(sT1)}, {WS_AP}")
    for f in range(5):
        if f in (2, 4):
            a(f"s_add_u32 {s(sT1)}, {s(sT1)}, 4096")
        a(f"buffer_load_dwordx2 {v(APS+2*f,2)}, v79, {s(R_WS,4)}, {s(sT1)} offen offset:{(f%2)*2048}")
    a("v_sub_u32 v48, 1, v77")
    a("v_lshlrev_b32 v48, 8, v48")
    a("v_lshl_add_u32 v48, v78, 1, v48")
    a(f"s_lshl_b32 {s(sT1)}, {s(sCT)}, 6")
    a(f"s_add_u32 {s(sT2)}, {s(sT1)}, 65536")
    for j in range(4):
        a(f"buffer_load_ushort {v(52+j)}, v48, {s(R_WE,4)}, {s(sT2)} offen offset:{256*j}")
    a("v_lshlrev_b32 v49, 3, v77")
    for q in range(4):
        a(f"buffer_load_dwordx2 {v(WXR+2*q,2)}, v49, {s(R_WX,4)}, {s(sT1)} offen offset:{16*q}")
    a("v_lshlrev_b32 v50, 4, v0")
    a(f"buffer_load_dwordx4 {v(HR,4)}, v50, {s(R_H,4)}, {s(sT0)} offen")
    a(f"s_add_u32 {s(sT0)}, {s(sT0)}, 8192")
    a(f"buffer_load_dwordx4 {v(HR+4,4)}, v50, {s(R_H,4)}, {s(sT0)} offen")
    NEARLY = 5 + 4 + 4 + 2
    for r in range(4):
        a(f"v_mov_b32 {v(ONES+r)}, 0")
    a(f"v_add_u32 v51, {IMG}, v50")
    zero_img(a, 51, ONES)
    a(f"v_lshlrev_b32 v51, 2, v0")
    a(f"v_add_u32 v51, {TOT}, v51")
    a(f"v_cmp_gt_u32 vcc, {(64+640)//4}, v0")
    a(f"s_and_saveexec_b64 {s(sRET,2)}, vcc")
    a(f"ds_write_b32 v51, {v(ONES)}")
    a("s_mov_b64 exec, -1")
    stamp(a, 2, STB)
    a(f"s_mov_b32 {s(sT0)}, {REC_STRIDE}")
    a(f"v_mul_lo_u32 v47, v19, {s(sT0)}")
    a(f"v_add_u32 v47, {WS_REC}, v47")
    a(f"s_waitcnt vmcnt({NEARLY+1})")
    stamp(a, 3, STB)
    a(f"v_add_u32 {v(vIDX)}, v144, v46")
    a(f"v_sub_u32 {v(vCNT)}, v149, {v(vIDX)}")
    a(f"v_lshl_add_u32 {v(vRA)}, {v(vIDX)}, 4, v47")
    a(f"v_lshl_add_u32 {v(vRB)}, {v(vIDX)}, 3, v47")
    a(f"v_add_u32 {v(vRB)}, {CH*16}, {v(vRB)}")
    a(f"s_waitcnt vmcnt({NEARLY})")
    a("v_sub_u32 v150, v147, v146")
    a("v_sub_u32 v151, v149, v148")
    issue_records(a, "first")
    if PF:
        a(f"s_lshr_b32 {s(sT0)}, s2, 3")
        a(f"s_cmp_eq_u32 {s(sT0)}, 31")
        a(f"s_cselect_b32 {s(sT0)}, 0, {s(sT0)}")
        a(f"s_mul_i32 {s(sT0)}, {s(sT0)}, {82688}")
        a(f"v_lshlrev_b32 v18, {PFSH}, v0")
        for i in range(PFN):
            a(f"buffer_load_dword v79, v18, {s(R_WS,4)}, {s(sT0)} offen")
            a(f"s_add_u32 {s(sT0)}, {s(sT0)}, {512<<PFSH}")
    a(f"v_lshlrev_b32 v152, 2, v46")
    a(f"v_add_u32 v152, {TOT}, v152")
    a("s_waitcnt lgkmcnt(0)")
    a("s_barrier")
    a("ds_add_rtn_u32 v153, v152, v150")
    a("s_mov_b64 exec, 0x1111111111111111" if False else "s_mov_b32 exec_lo, 0x11111111\ns_mov_b32 exec_hi, 0x11111111")
    a("ds_add_rtn_u32 v154, v152, v151 offset:16")
    a("s_mov_b64 exec, -1")
    a(f"v_lshlrev_b32 {v(vDB)}, 5, v19")
    a(f"v_add_u32 {v(vDB)}, {DELTA}, {v(vDB)}")
    a("v_lshlrev_b32 v155, 4, v77")
    a("v_sub_u32 v155, v78, v155")
    a("v_lshlrev_b32 v155, 4, v155")
    a("v_mov_b32 v158, 0x3f80")
    for sidx in range(2):
        for dw in range(4):
            z0 = 4*sidx + 8*(dw >> 1) + 2*(dw & 1)
            a(f"v_subrev_u32 v156, {16*z0}, v155")
            a("v_cmp_gt_u32 vcc, 32, v156")
            a("v_lshlrev_b32 v157, v156, v158")
            a("s_nop 0")
            a(f"v_cndmask_b32 {v(IDENT+4*sidx+dw)}, 0, v157, vcc")
    a("s_waitcnt lgkmcnt(0)")
    a("s_barrier")
    stamp(a, 4, STB)
    a(f"v_mov_b32 v155, {TOT}")
    a("ds_read_b128 v[156:159], v155")
    a("ds_read_b32 v155, v155 offset:16")
    a(f"s_mul_i32 {s(sT0)}, {s(sPAR)}, 2560")
    a(f"s_add_u32 {s(sT0)}, {s(sT0)}, {IMG}")
    a(f"s_lshl_b32 {s(sM0A)}, {s(sWAVE)}, 12")
    if GB: a(f"s_add_u32 {s(sM0A)}, {s(sM0A)}, {GB}")
    a(f"s_mul_i32 {s(sB40)}, s2, 40")
    L = vLANE
    a(f"v_lshrrev_b32 v18, 4, {v(L)}")
    a(f"v_and_b32 v19, 3, {v(L)}")
    a(f"v_xor_b32 {v(vK)}, v18, v19")
    a(f"v_lshlrev_b32 {v(vK)}, 4, {v(vK)}")
    a(f"s_lshl_b32 {s(sT1)}, {s(sCT)}, 6")
    a(f"v_add_u32 {v(vK)}, {s(sT1)}, {v(vK)}")
    a("v_bfe_u32 v47, v78, 2, 2")
    a("v_xor_b32 v47, v47, v77")
    a("v_lshlrev_b32 v47, 4, v47")
    a(f"v_lshl_add_u32 {v(vA0)}, v78, 6, v47")
    a(f"v_add_u32 {v(vA0)}, {s(sM0A)}, {v(vA0)}")
    a(f"v_xor_b32 {v(vA1)}, 32, {v(vA0)}")
    def slot16(dst, rho, t):
        a(f"v_and_b32 {v(dst)}, 3, {v(rho)}")
        a(f"v_bfe_u32 {v(t)}, {v(rho)}, 2, 1")
        a(f"v_lshl_or_b32 {v(dst)}, {v(t)}, 3, {v(dst)}")
        a(f"v_bfe_u32 {v(t)}, {v(rho)}, 3, 1")
        a(f"v_lshl_or_b32 {v(dst)}, {v(t)}, 2, {v(dst)}")
    a(f"v_lshrrev_b32 v47, 2, {v(L)}")
    slot16(vO, 47, 76)
    a(f"v_lshlrev_b32 {v(vO)}, 4, {v(vO)}")
    a(f"v_add_u32 {v(vO)}, {1024+12}, {v(vO)}")
    a(f"v_add_u32 {v(vO)}, {s(sT0)}, {v(vO)}")
    slot16(vX, 78, 76)
    a(f"v_lshlrev_b32 {v(vX)}, 4, {v(vX)}")
    a(f"v_lshl_add_u32 {v(vX)}, v77, 3, {v(vX)}")
    a("v_bfe_u32 v47, v78, 4, 1")
    a("v_mul_u32_u24 v47, 1280, v47")
    a(f"v_add3_u32 {v(vX)}, {v(vX)}, v47, {s(sT0)}")
    a(f"v_add_u32 {v(vX)}, 1024, {v(vX)}")
    a(f"v_bfe_u32 v76, {v(L)}, 2, 2")
    a("v_lshl_add_u32 v76, v77, 2, v76")
    a(f"v_lshl_add_u32 {v(vT)}, v76, 4, v47")
    a("v_and_b32 v76, 1, v19")
    a(f"v_lshl_add_u32 {v(vT)}, v76, 9, {v(vT)}")
    a("v_lshrrev_b32 v76, 1, v19")
    a(f"v_lshl_add_u32 {v(vT)}, v76, 3, {v(vT)}")
    a(f"v_add_u32 {v(vT)}, {s(sT0)}, {v(vT)}")
    a(f"s_sub_u32 {s(sT0)}, {s(sT0)}, 5120")
    a(f"v_lshlrev_b32 {v(vS)}, 4, {v(L)}")
    a(f"v_add_u32 {v(vS)}, {s(sT0)}, {v(vS)}")
    a("s_waitcnt lgkmcnt(0)")
    for f in range(4):
        a(f"v_readfirstlane_b32 {s(sB+1+f)}, {v(156+f)}")
    a(f"v_readfirstlane_b32 {s(sB+5)}, v155")
    a(f"s_mov_b32 {s(sB)}, 0")
    a("s_nop 2")
    for f in range(5):
        a(f"s_add_u32 {s(sB+1+f)}, {s(sB+1+f)}, 31")
        a(f"s_lshr_b32 {s(sB+1+f)}, {s(sB+1+f)}, 5")
        a(f"s_add_u32 {s(sB+1+f)}, {s(sB+1+f)}, {s(sB+f)}")
    a("v_sub_u32 v153, v153, v146")
    a("v_sub_u32 v154, v154, v148")
    for f in range(1, 4):
        m = 0x11111111 << f
        a(f"s_lshl_b32 {s(sT0)}, {s(sB+f)}, 5")
        a(f"s_mov_b32 exec_lo, {m:#x}\ns_mov_b32 exec_hi, {m:#x}")
        a(f"v_add_u32 v153, {s(sT0)}, v153")
    a(f"s_lshl_b32 {s(sT0)}, {s(sB+4)}, 5")
    a("s_mov_b32 exec_lo, 0x11111111\ns_mov_b32 exec_hi, 0x11111111")
    a(f"v_add_u32 v154, {s(sT0)}, v154")
    a(f"ds_write_b32 {v(vDB)}, v154 offset:16")
    a("s_mov_b64 exec, -1")
    a(f"v_lshl_add_u32 v152, v46, 2, {v(vDB)}")
    a("ds_write_b32 v152, v153")
    a("s_mov_b32 exec_hi, 0")
    a(f"v_mov_b32 {v(ONES)}, 0x3f80")
    a("s_mov_b64 exec, -1")
    for r in range(80):
        a(f"v_mov_b32 {v(SAVED+r)}, 0")
    a(f"s_mov_b32 {s(sRBASE)}, 0")
    a(f"s_mov_b32 {s(sJB)}, 0")
    a(f"s_waitcnt vmcnt({PFN if PF else 0})")
    stamp(a, 5, STB)
    a(f"s_mov_b32 {s(sT0)}, {NEG_LOG2E:#x}")
    for j in range(4):
        a(f"v_lshlrev_b32 {v(52+j)}, 16, {v(52+j)}")
        a(f"v_mul_f32 {v(52+j)}, {s(sT0)}, {v(52+j)}")
    a(f"v_cvt_pk_bf16_f32 {v(WEXT+2)}, v52, v53")
    a(f"v_cvt_pk_bf16_f32 {v(WEXT+3)}, v54, v55")
    a(f"v_lshlrev_b32 v53, 16, {v(WEXT+2)}")
    a("v_sub_f32 v53, v52, v53")
    a("s_mov_b32 exec_lo, 0")
    a(f"v_cvt_pk_bf16_f32 {v(WEXT+2)}, v52, v53")
    a(f"v_mov_b32 {v(WEXT+3)}, 0")
    a("s_mov_b64 exec, -1")
    a("K2_BATCH:")
    a("v_mov_b32 v158, 0x3f80")
    a(f"v_mov_b32 v159, {IMG}")
    done = "K2_PA_DONE"
    for j in range(8):
        a(f"v_cmpx_lt_i32 vcc, {4*j}, {v(vCNT)}")
        a(f"s_cbranch_execz {done}")
        a(f"v_lshrrev_b32 {v(48+j)}, 16, {v(RECB(j)+1)}")
        a(f"v_subrev_u32 {v(48+j)}, {s(sB40)}, {v(48+j)}")
        a(f"v_lshrrev_b32 {v(56+j)}, 3, {v(48+j)}")
        a(f"v_lshl_add_u32 {v(56+j)}, {v(56+j)}, 2, {v(vDB)}")
        a(f"ds_read_b32 {v(56+j)}, {v(56+j)}")
    a(f"{done}:")
    a("s_mov_b64 exec, -1")
    a(f"s_lshl_b32 {s(sT0)}, {s(sRBASE)}, 5")
    a(f"v_subrev_u32 v64, {s(sT0)}, {v(vIDX)}")
    a(f"s_mov_b32 {s(sT1)}, {CAPS}")
    a("s_waitcnt lgkmcnt(0)")
    done = "K2_PB_DONE"
    for j in range(8):
        a(f"v_cmpx_lt_i32 vcc, {4*j}, {v(vCNT)}")
        a(f"s_cbranch_execz {done}")
        a(f"v_add3_u32 v65, v64, {v(56+j)}, {4*j}")
        a(f"v_cmp_gt_u32 vcc, {s(sT1)}, v65")
        a(f"s_and_saveexec_b64 {s(sRET,2)}, vcc")
        a("v_lshrrev_b32 v66, 4, v65")
        a("v_and_b32 v65, 15, v65")
        a("v_mul_u32_u24 v66, 1280, v66")
        a("v_mul_u32_u24 v67, 66, v65")
        a("v_add_u32 v66, v66, v159")
        a("v_and_b32 v67, 0x20e, v67")
        a("v_lshl_add_u32 v65, v65, 4, v66")
        a(f"v_and_b32 v68, 7, {v(48+j)}")
        a("v_lshl_add_u32 v67, v68, 4, v67")
        a("v_add_u32 v67, v67, v66")
        a(f"ds_write_b128 v65, {v(RECA(j),4)} offset:1024")
        a("ds_write_b16 v67, v158")
        a(f"ds_write_b16 v67, {v(RECB(j))} offset:128")
        a(f"ds_write_b16_d16_hi v67, {v(RECB(j))} offset:256")
        a(f"ds_write_b16 v67, {v(RECB(j)+1)} offset:384")
        a(f"s_mov_b64 exec, {s(sRET,2)}")
    a(f"{done}:")
    a("s_mov_b64 exec, -1")
    a(f"v_cmp_lt_i32 vcc, 32, {v(vCNT)}")
    a("s_cbranch_vccnz K2_MOREBATCH")
    a("K2_BUILT:")
    a(f"s_sub_u32 {s(sN)}, {s(sB+5)}, {s(sRBASE)}")
    a(f"s_min_u32 {s(sN)}, {s(sN)}, {CAPT}")
    a(f"s_add_u32 {s(sN)}, {s(sN)}, 1")
    a(f"s_sub_u32 {s(sN)}, {s(sN)}, {s(sPAR)}")
    a(f"s_lshr_b32 {s(sN)}, {s(sN)}, 1")
    for r in list(range(SA, SA+16)) + list(range(ACC2, ACC2+16)) + list(range(Y[1], Y[1]+16)) + list(range(U[1], U[1]+16)):
        a(f"v_mov_b32 {v(r)}, 0")
    a(f"s_add_u32 {s(sTG1)}, {s(sRBASE)}, {s(sPAR)}")
    a(f"s_sub_u32 {s(sTG2)}, {s(sTG1)}, 2")
    a(f"s_mov_b32 {s(sF2)}, 0")
    a(f"s_mov_b32 {s(sNB2)}, {s(sB+1)}")
    a(f"s_call_b64 {s(sRET,2)}, K2_WEXT")
    a(f"s_add_u32 {s(sTG1)}, {s(sTG1)}, 2")
    a(f"s_mov_b32 {s(sI)}, 0")
    a("s_waitcnt lgkmcnt(0)")
    a("s_barrier")
    stamp(a, 6, STB)
    a(f"s_cmp_eq_u32 {s(sN)}, 0")
    a("s_cbranch_scc1 K2_ROUND_END")
    def dma(so, buf):
        a(f"v_add_u32 {v(VOFF)}, {v(so)}, {v(vK)}")
        a(f"v_add_u32 {v(VOFF+1)}, {v(so+1)}, {v(vK)}")
        a(f"s_add_u32 m0, {s(sM0A)}, {buf*2048}")
        a("s_nop 0")
        a(f"buffer_load_dwordx4 {v(VOFF)}, {s(R_WS,4)}, 0 offen lds")
        a(f"s_add_u32 m0, {s(sM0A)}, {buf*2048+1024}")
        a("s_nop 0")
        a(f"buffer_load_dwordx4 {v(VOFF+1)}, {s(R_WS,4)}, 0 offen lds")
    def Lreads(buf, toff):
        return [f"ds_read_b128 {v(AF,4)}, {v(vA0)} offset:{buf*2048}",
                f"ds_read_b128 {v(AF+4,4)}, {v(vA1)} offset:{buf*2048}",
                f"ds_read_b64_tr_b16 {v(XE,2)}, {v(vT)} offset:{toff*5120}",
                f"ds_read_b64 {v(XE+2,2)}, {v(vX)} offset:{toff*5120}"]
    def G1(y):
        return [f"v_mfma_f32_32x32x16_bf16 {v(y,16)}, {v(AF,4)}, {v(IDENT,4)}, 0",
                f"v_mfma_f32_32x32x16_bf16 {v(y,16)}, {v(AF+4,4)}, {v(IDENT+4,4)}, {v(y,16)}",
                f"v_mfma_f32_32x32x16_bf16 {v(y,16)}, {v(XE,4)}, {v(WEXT,4)}, {v(y,16)}"]
    G2a = f"v_mfma_f32_32x32x16_bf16 {v(ACC2,16)}, {v(M,4)}, {v(SA,4)}, {v(ACC2,16)}"
    G2b = f"v_mfma_f32_32x32x16_bf16 {v(ACC2,16)}, {v(M+4,4)}, {v(SB,4)}, {v(ACC2,16)}"
    for t in range(3):
        a(f"ds_read2st64_b32 {v(U[0]+2*t,2)}, {v(vO)} offset0:{t*20} offset1:{t*20+5}")
    a("s_waitcnt lgkmcnt(0)")
    dma(U[0], 0)
    a(f"s_cmp_lt_u32 {s(sN)}, 2")
    a("s_cbranch_scc1 K2_PRO1")
    dma(U[0]+2, 1)
    a("s_waitcnt vmcnt(2)")
    a("s_branch K2_PRO2")
    a("K2_PRO1:")
    a("s_waitcnt vmcnt(0)")
    a("K2_PRO2:")
    stamp(a, 7, STB)
    for x in Lreads(0, 0): a(x)
    a("s_waitcnt lgkmcnt(0)")
    for x in G1(Y[0]): a(x)
    a(f"s_cmp_lt_u32 {s(sN)}, 3")
    a("s_cbranch_scc1 K2_PRO3")
    dma(U[0]+4, 0)
    a("K2_PRO3:")
    a("s_nop 7")
    a("s_nop 3")
    a("K2_LOOP:")
    for k in range(4):
        p = k & 1
        y, yp, u, up = Y[p], Y[1-p], U[p], U[1-p]
        l1 = a.label("K2_W"); l2 = a.label("K2_W")
        if not NOBR:
            a(f"s_add_u32 {s(sT0)}, {s(sI)}, 2")
            a(f"s_cmp_lt_u32 {s(sT0)}, {s(sN)}")
            a(f"s_cbranch_scc1 {l1}")
            a("s_waitcnt vmcnt(0)")
            a(f"{l1}:")
        a("s_waitcnt vmcnt(2)")
        if not NOLDS:
            for x in Lreads(1-p, k+1): a(x)
        if NOLDS < 2:
            a(f"ds_read2st64_b32 {v(SO,2)}, {v(vO)} offset0:{(k+3)*20} offset1:{(k+3)*20+5}")
        exps = [f"v_exp_f32 {v(u+i)}, {v(y+i)}" for i in range(16)]
        lsa = f"ds_read_b128 {v(SA,4)}, {v(vS)} offset:{k*5120}"
        lsb = f"ds_read_b128 {v(SB,4)}, {v(vS)} offset:{k*5120+1280}"
        if k == 0:
            l3 = a.label("K2_W")
            ins = [G2b, f"s_cmp_eq_u32 {s(sI)}, 0", f"s_cbranch_scc1 {l3}", lsa, lsb, f"{l3}:"]
        else:
            ins = [G2b, lsa, lsb]
        if NOLDS: ins = [G2b]
        elif NOBR: ins = [G2b, lsa, lsb]
        for x in interleave(exps, {2: ins}): a(x)
        for i in range(8):
            a(f"v_pk_mul_f32 {v(up+2*i,2)}, {v(up+2*i,2)}, {v(yp+2*i,2)}")
        a(f"v_mfma_f32_32x32x16_bf16 {v(u,16)}, {v(ONES,4)}, {v(ONES,4)}, {v(u,16)}")
        for i in range(8):
            a(f"v_cvt_pk_bf16_f32 {v(M+i)}, {v(up+2*i)}, {v(up+2*i+1)}")
        l4 = a.label("K2_W"); l5 = a.label("K2_W"); l6 = a.label("K2_W")
        if not NOBR:
            a(f"s_cmp_lt_i32 {s(sTG2)}, {s(sNB2)}")
            a(f"s_cbranch_scc1 {l4}")
            a(f"s_call_b64 {s(sRET,2)}, K2_FLUSH")
            a(f"{l4}:")
            a(f"s_cmp_lt_i32 {s(sTG1)}, {s(sNB1)}")
            a(f"s_cbranch_scc1 {l5}")
            a(f"s_call_b64 {s(sRET,2)}, K2_WEXT")
            a(f"{l5}:")
        a(f"s_add_u32 {s(sT0)}, {s(sI)}, 3")
        a(f"s_cmp_lt_u32 {s(sT0)}, {s(sN)}")
        a("s_waitcnt lgkmcnt(0)")
        a(f"s_cbranch_scc0 {l6}")
        if not NODMA: dma(SO, 1-p)
        else: a("s_nop 3")
        a(f"{l6}:")
        rcps = [f"v_rcp_f32 {v(u+i)}, {v(u+i)}" for i in range(16)]
        g1 = G1(yp)
        for x in interleave(rcps, {0: g1[0:1], 4: g1[1:2], 8: g1[2:3], 12: [G2a]}): a(x)
        a(f"s_add_u32 {s(sI)}, {s(sI)}, 1")
        a(f"s_add_u32 {s(sTG1)}, {s(sTG1)}, 2")
        a(f"s_add_u32 {s(sTG2)}, {s(sTG2)}, 2")
        a(f"s_cmp_ge_u32 {s(sI)}, {s(sN)}")
        a(f"s_cbranch_scc1 K2_EXIT{k}")
        if k == 3:
            for r in (vT, vX, vO, vS):
                a(f"v_add_u32 {v(r)}, {4*5120}, {v(r)}")
            a("s_branch K2_LOOP")
    for k in range(4):
        p = k & 1
        y, u = Y[p], U[p]
        a(f"K2_EXIT{k}:")
        a(f"ds_read_b128 {v(SA,4)}, {v(vS)} offset:{(k+1)*5120}")
        a(G2b)
        a(f"ds_read_b128 {v(SB,4)}, {v(vS)} offset:{(k+1)*5120+1280}")
        for i in range(8):
            a(f"v_pk_mul_f32 {v(u+2*i,2)}, {v(u+2*i,2)}, {v(y+2*i,2)}")
        for i in range(8):
            a(f"v_cvt_pk_bf16_f32 {v(M+i)}, {v(u+2*i)}, {v(u+2*i+1)}")
        if k < 3:
            a("s_branch K2_EXITC")
    a("K2_EXITC:")
    l4 = a.label("K2_W")
    a(f"s_cmp_lt_i32 {s(sTG2)}, {s(sNB2)}")
    a(f"s_cbranch_scc1 {l4}")
    a(f"s_call_b64 {s(sRET,2)}, K2_FLUSH")
    a(f"{l4}:")
    a("s_waitcnt lgkmcnt(0)")
    a(G2a)
    a(G2b)
    a("s_nop 15")
    a(f"s_call_b64 {s(sRET,2)}, K2_FLUSH")
    a("K2_ROUND_END:")
    a(f"s_add_u32 {s(sT0)}, {s(sRBASE)}, {CAPT}")
    a(f"s_cmp_lt_u32 {s(sT0)}, {s(sB+5)}")
    a("s_cbranch_scc1 K2_NEXTROUND")
    stamp(a, 8, STB)
    WF = 96
    a(f"v_lshlrev_b32 v18, 4, {v(L)}")
    a(f"s_lshl_b32 {s(sT0)}, {s(sCT)}, 14")
    a(f"s_add_u32 {s(sT0)}, {s(sT0)}, {WS_WHF}")
    for sidx in range(16):
        a(f"buffer_load_dwordx4 {v(WF+4*sidx,4)}, v18, {s(R_WS,4)}, {s(sT0)} offen offset:{(sidx%4)*1024}")
        if sidx % 4 == 3 and sidx < 15:
            a(f"s_add_u32 {s(sT0)}, {s(sT0)}, 4096")
    srd(a, R_POS, P_POS, N*6)
    srd(a, R_OUT, P_OUT, 1310000*2)
    a(f"s_mul_i32 {s(sT1)}, s2, 240")
    a("v_lshlrev_b32 v19, 1, v0")
    a(f"buffer_load_ushort v46, v19, {s(R_POS,4)}, {s(sT1)} offen")
    a(f"v_lshrrev_b32 v77, 5, {v(L)}")
    a(f"v_and_b32 v78, 31, {v(L)}")
    for q in range(8):
        a(f"v_lshlrev_b32 {v(48+2*q)}, 16, {v(WXR+q)}")
        a(f"v_and_b32 {v(49+2*q)}, 0xffff0000, {v(WXR+q)}")
    a("v_lshlrev_b32 v47, 2, v78")
    a(f"v_add_u32 v47, {POSACC}, v47")
    for f in range(5):
        a(f"v_mul_f32 {v(64+f)}, v48, {v(SAVED+16*f)}")
        for r in range(1, 16):
            a(f"v_fmac_f32 {v(64+f)}, {v(48+r)}, {v(SAVED+16*f+r)}")
        a(f"ds_add_f32 v47, {v(64+f)} offset:{f*128}")
    a("v_mul_u32_u24 v70, 528, v78")
    a("v_lshl_add_u32 v70, v77, 4, v70")
    a(f"s_lshl_b32 {s(sT0)}, {s(sCT)}, 7")
    a(f"v_add_u32 v70, {s(sT0)}, v70")
    a("v_mul_u32_u24 v71, 272, v78")
    a("v_lshl_add_u32 v72, v77, 3, v71")
    a(f"s_lshl_b32 {s(sT0)}, {s(sCT)}, 6")
    a(f"v_add_u32 v72, {s(sT0)}, v72")
    a("v_lshl_add_u32 v71, v77, 4, v71")
    a(f"s_mul_i32 {s(sT0)}, {s(sPAR)}, {32*272}")
    a(f"v_add_u32 v71, {s(sT0)}, v71")
    a(f"v_add_u32 v73, {s(sT0)}, v72")
    a("v_lshrrev_b32 v74, 4, v0")
    a("v_mul_u32_u24 v74, 272, v74")
    a("v_and_b32 v75, 15, v0")
    a("v_lshl_add_u32 v74, v75, 4, v74")
    a("s_waitcnt lgkmcnt(0)")
    a("s_barrier")
    stamp(a, 9, STB)
    a(f"ds_write_b128 v74, {v(HR,4)} offset:{HBF}")
    a(f"ds_write_b128 v74, {v(HR+4,4)} offset:{HBF+32*272}")
    a("s_mov_b32 exec_lo, 0xff\ns_mov_b32 exec_hi, 0xff")
    a(f"s_cmp_eq_u32 {s(sPAR)}, 0")
    a("s_cbranch_scc1 K2_T4_P0")
    for grp, lab in (((0, 1, 2), None), ((3, 4), "K2_T4_P0")):
        if lab: a(f"{lab}:")
        for f in grp:
            for q in range(4):
                a(f"ds_write_b128 v70, {v(SAVED+16*f+4*q,4)} offset:{MB1+f*4224+q*32}")
        if not lab: a("s_branch K2_T4_DONE")
    a("K2_T4_DONE:")
    a("s_waitcnt lgkmcnt(0)")
    a("s_barrier")
    a(f"s_mov_b32 {s(sT2)}, {NEG_LN2:#x}")
    a(f"s_cmp_eq_u32 {s(sPAR)}, 0")
    a("s_cbranch_scc1 K2_T6_P0")
    for grp, lab in (((3, 4), None), ((0, 1, 2), "K2_T6_P0")):
        if lab: a(f"{lab}:")
        for f in grp:
            for q in range(4):
                a(f"ds_read_b128 {v(48+4*q,4)}, v70 offset:{MB1+f*4224+q*32}")
            for q in range(4):
                a(f"s_waitcnt lgkmcnt({3-q})")
                for r in range(4):
                    a(f"v_add_f32 {v(48+4*q+r)}, {v(48+4*q+r)}, {v(SAVED+16*f+4*q+r)}")
                    a(f"v_mul_f32 {v(48+4*q+r)}, {s(sT2)}, {v(48+4*q+r)}")
                a(f"v_cvt_pk_bf16_f32 {v(80+2*q)}, {v(48+4*q)}, {v(48+4*q+1)}")
                a(f"v_cvt_pk_bf16_f32 {v(81+2*q)}, {v(48+4*q+2)}, {v(48+4*q+3)}")
            for q in range(4):
                a(f"ds_write_b64 v72, {v(80+2*q,2)} offset:{MBF+f*2176+q*16}")
            a("s_waitcnt lgkmcnt(0)")
        if not lab: a("s_branch K2_T6_DONE")
    a("K2_T6_DONE:")
    a("s_mov_b64 exec, -1")
    a("s_barrier")
    stamp(a, 10, STB)
    BF = 160
    for sidx in range(16):
        off = (HBF + sidx*32) if sidx < 8 else (MBF + (sidx-8)*32)
        a(f"ds_read_b128 {v(BF+4*sidx,4)}, v71 offset:{off}")
    for q in range(4):
        a(f"ds_read_b64 {v(48+2*q,2)}, v73 offset:{HBF+q*16}")
    a("v_mul_u32_u24 v64, 0x5556, v0")
    a("v_lshrrev_b32 v64, 16, v64")
    a("v_mul_u32_u24 v65, 3, v64")
    a("v_sub_u32 v65, v0, v65")
    a("v_lshrrev_b32 v66, 3, v64")
    a("v_and_b32 v64, 7, v64")
    a("v_lshl_add_u32 v64, v66, 5, v64")
    a("v_lshl_add_u32 v64, v65, 3, v64")
    a("v_lshlrev_b32 v64, 2, v64")
    a(f"v_add_u32 v64, {POSACC+32}, v64")
    a("ds_read_b32 v64, v64")
    a("s_waitcnt vmcnt(0)")
    for sidx in range(16):
        a(f"s_waitcnt lgkmcnt({min(15, 20-sidx)})")
        c = "0" if sidx == 0 else v(ACC2,16)
        a(f"v_mfma_f32_32x32x16_bf16 {v(ACC2,16)}, {v(WF+4*sidx,4)}, {v(BF+4*sidx,4)}, {c}")
    a("s_waitcnt lgkmcnt(0)")
    a("v_lshlrev_b32 v46, 16, v46")
    a(f"v_fma_f32 v46, v64, {s(sT2)}, v46")
    a("v_cvt_pk_bf16_f32 v46, v46, v46")
    a(f"s_add_u32 {s(sT1)}, {s(sT1)}, 2560000")
    a("v_cmp_gt_u32 vcc, 120, v0")
    a(f"s_and_saveexec_b64 {s(sRET,2)}, vcc")
    a("s_cbranch_execz K2_NOPOS")
    a(f"buffer_store_short v46, v19, {s(R_OUT,4)}, {s(sT1)} offen")
    a("K2_NOPOS:")
    a("s_mov_b64 exec, -1")
    a("v_lshlrev_b32 v70, 8, v78")
    a("v_lshl_add_u32 v70, v77, 3, v70")
    a(f"s_mul_i32 {s(sT0)}, s2, 10240")
    a(f"s_lshl_b32 {s(sT1)}, {s(sPAR)}, 13")
    a(f"s_add_u32 {s(sT0)}, {s(sT0)}, {s(sT1)}")
    a(f"s_lshl_b32 {s(sT1)}, {s(sCT)}, 6")
    a(f"s_add_u32 {s(sT0)}, {s(sT0)}, {s(sT1)}")
    a(f"s_mov_b32 {s(sT2)}, {NEG_LOG2E:#x}")
    a("s_nop 4")
    for r in range(16):
        a(f"v_mul_f32 {v(96+r)}, {s(sT2)}, {v(ACC2+r)}")
    for r in range(16):
        a(f"v_exp_f32 {v(96+r)}, {v(96+r)}")
    for r in range(16):
        a(f"v_add_f32 {v(96+r)}, 1.0, {v(96+r)}")
    for r in range(16):
        a(f"v_rcp_f32 {v(96+r)}, {v(96+r)}")
    for q in range(8):
        a(f"v_lshlrev_b32 {v(112+2*q)}, 16, {v(48+q)}")
        a(f"v_and_b32 {v(113+2*q)}, 0xffff0000, {v(48+q)}")
    for r in range(16):
        a(f"v_fmac_f32 {v(112+r)}, {v(96+r)}, {v(ACC2+r)}")
    for q in range(8):
        a(f"v_cvt_pk_bf16_f32 {v(128+q)}, {v(112+2*q)}, {v(113+2*q)}")
    a(f"s_cmp_eq_u32 {s(sPAR)}, 0")
    a("s_cbranch_scc1 K2_ST")
    a("s_mov_b32 exec_lo, 0xff\ns_mov_b32 exec_hi, 0xff")
    a("K2_ST:")
    for q in range(4):
        a(f"buffer_store_dwordx2 {v(128+2*q,2)}, v70, {s(R_OUT,4)}, {s(sT0)} offen offset:{q*16}")
    stamp(a, 11, STB)
    if asmlib.STAMPS:
        a("s_waitcnt vmcnt(0)")
        stamp(a, 12, STB); stamp(a, 13, STB)
        stamp_rt(a, 14, STB)
        stamp_flush(a, 15, R_WS, 1, 200, sWAVE, STB)
    a("K2_END:")
    a("s_endpgm")

    def bucket_of(tg, dst):
        a(f"s_mov_b32 {s(dst)}, 0")
        for f in range(1, 5):
            a(f"s_cmp_ge_i32 {s(tg)}, {s(sB+f)}")
            a(f"s_addc_u32 {s(dst)}, {s(dst)}, 0")
    a("K2_WEXT:")
    bucket_of(sTG1, sT0)
    for f in range(5):
        if f < 4:
            a(f"s_cmp_lg_u32 {s(sT0)}, {f}")
            a(f"s_cbranch_scc1 K2_WEXT{f+1}")
        a(f"v_mov_b32 {v(WEXT)}, {v(APS+2*f)}")
        a(f"v_mov_b32 {v(WEXT+1)}, {v(APS+2*f+1)}")
        if f < 4:
            a(f"s_mov_b32 {s(sNB1)}, {s(sB+f+1)}")
        else:
            a(f"s_mov_b32 {s(sNB1)}, 0x7fffffff")
        a(f"s_setpc_b64 {s(sRET,2)}")
        if f < 4:
            a(f"K2_WEXT{f+1}:")
    a("K2_FLUSH:")
    for f in range(5):
        if f < 4:
            a(f"s_cmp_lg_u32 {s(sF2)}, {f}")
            a(f"s_cbranch_scc1 K2_FL{f+1}")
        for r in range(16):
            a(f"v_add_f32 {v(SAVED+16*f+r)}, {v(SAVED+16*f+r)}, {v(ACC2+r)}")
        if f < 4:
            a("s_branch K2_FLZ")
            a(f"K2_FL{f+1}:")
    a("K2_FLZ:")
    for r in range(16):
        a(f"v_mov_b32 {v(ACC2+r)}, 0")
    bucket_of(sTG2, sF2)
    a(f"s_mov_b32 {s(sNB2)}, 0x7fffffff")
    for f in range(3, -1, -1):
        a(f"s_cmp_eq_u32 {s(sF2)}, {f}")
        a(f"s_cselect_b32 {s(sNB2)}, {s(sB+f+1)}, {s(sNB2)}")
    a(f"s_setpc_b64 {s(sRET,2)}")
    a("K2_MOREBATCH:")
    a(f"v_subrev_u32 {v(vCNT)}, 32, {v(vCNT)}")
    a(f"v_add_u32 {v(vIDX)}, 32, {v(vIDX)}")
    a(f"v_add_u32 {v(vRA)}, 512, {v(vRA)}")
    a(f"v_add_u32 {v(vRB)}, 256, {v(vRB)}")
    a(f"s_add_u32 {s(sJB)}, {s(sJB)}, 32")
    a("s_waitcnt lgkmcnt(0)")
    issue_records(a, "more")
    a("s_waitcnt vmcnt(0)")
    a("s_branch K2_BATCH")
    a("K2_NEXTROUND:")
    a(f"s_mov_b32 {s(sRBASE)}, {s(sT0)}")
    a(f"v_add_u32 {v(vCNT)}, {s(sJB)}, {v(vCNT)}")
    a(f"v_subrev_u32 {v(vIDX)}, {s(sJB)}, {v(vIDX)}")
    a(f"s_lshl_b32 {s(sT0)}, {s(sJB)}, 4")
    a(f"v_subrev_u32 {v(vRA)}, {s(sT0)}, {v(vRA)}")
    a(f"s_lshl_b32 {s(sT0)}, {s(sJB)}, 3")
    a(f"v_subrev_u32 {v(vRB)}, {s(sT0)}, {v(vRB)}")
    a(f"s_mov_b32 {s(sJB)}, 0")
    a(f"s_max_u32 {s(sT0)}, {s(sN)}, 1")
    a(f"s_sub_u32 {s(sT0)}, {s(sT0)}, 1")
    a(f"s_lshr_b32 {s(sT0)}, {s(sT0)}, 2")
    a(f"s_mul_i32 {s(sT0)}, {s(sT0)}, {4*5120}")
    for r in (vT, vX, vO, vS):
        a(f"v_subrev_u32 {v(r)}, {s(sT0)}, {v(r)}")
    a("s_waitcnt vmcnt(0) lgkmcnt(0)")
    a("s_barrier")
    for r in range(4):
        a(f"v_mov_b32 {v(48+r)}, 0")
    a("v_lshlrev_b32 v52, 4, v0")
    a(f"v_add_u32 v52, {IMG}, v52")
    zero_img(a, 52, 48)
    issue_records(a, "round")
    a("s_waitcnt vmcnt(0) lgkmcnt(0)")
    a("s_barrier")
    a("s_branch K2_BATCH")
```

```python
import os
NAME = "gather_scatter__cheap_equivariant_egnn__graph"
N = 10000; E = 320000
NCH = 125; CH = 2560
NG = 105
K1_GRID = NCH + NG + 1
WS_BP = 0x1000
WS_AP = 0x280000
AP_CTS = 252 * 3072
WS_OFFS = 0x580000
WS_WHF = 0x600000
WS_CP = 0x610000
WS_RA = 0x620000
WS_RB = 0xB10000
REC_STRIDE = CH * 20
WS_SIZE = 0x10000000
NEG_LOG2E = 0xbfb8aa3b
NEG_LN2 = 0xbf317218
assert WS_BP + 10080*256 <= WS_AP and WS_AP + 4*AP_CTS <= WS_OFFS and WS_OFFS + NCH*4096 <= WS_WHF and WS_RA + E*16 <= WS_RB
def env(n, d): return int(os.environ.get(n, str(d)))
STF = os.environ.get("STF", "sc1")

def srd(a, d, base, nbytes, add=0, stride=0):
    if add:
        a(f"s_add_u32 s{d}, s{base}, {add}")
        a(f"s_addc_u32 s{d+1}, s{base+1}, 0")
        a(f"s_and_b32 s{d+1}, s{d+1}, 0xffff")
    else:
        a(f"s_mov_b32 s{d}, s{base}")
        a(f"s_and_b32 s{d+1}, s{base+1}, 0xffff")
    if stride:
        a(f"s_or_b32 s{d+1}, s{d+1}, {stride<<16:#x}")
    a(f"s_mov_b32 s{d+2}, {nbytes}")
    a(f"s_mov_b32 s{d+3}, 0x00020000")
```

```python
import sys
sys.path.insert(0,"dev2")
import asmlib
from asmlib import Asm, v, s
import cfg
from gen import descriptor
asmlib.STAMPS=True
a=Asm()
VARS = [("a",4,0),("b",4,1),("c",4,2),("d",4,3),("e",4,6),("f",1,0),("g",1,1),("h",1,2),("i",1,3),("j",1,4)]
for V in VARS:
    a.lines.append(f"; @launch kernel=mb{V[0]}_kernel grid=(250,1,1) block=(512,1,1) lds=128000")
a('.amdgcn_target "amdgcn-amd-amdhsa--gfx950"')
a(".text")
NI=6
for ki,(nm,W,RL) in enumerate(VARS):
    a(f".globl mb{nm}_kernel\n.p2align 8\n.type mb{nm}_kernel,@function\nmb{nm}_kernel:")
    base=40
    def st(i):
        a(f"s_memtime s[{base+2*i}:{base+1+2*i}]")
        a("s_waitcnt lgkmcnt(0)")
    a("s_cmp_ge_u32 s2, 250")
    a(f"s_cbranch_scc1 END{nm}")
    a("s_load_dwordx2 s[34:35], s[0:1], 80")
    a("v_lshrrev_b32 v1, 6, v0")
    a("v_readfirstlane_b32 s3, v1")
    a("s_waitcnt lgkmcnt(0)")
    cfg.srd(a, 36, 34, cfg.WS_SIZE)
    a("v_lshlrev_b32 v2, 4, v0")
    a("s_mov_b32 s4, 0")
    a(f"WARM{nm}:")
    a("buffer_load_dwordx4 v[4:7], v2, s[36:39], s4 offen")
    a("s_add_u32 s4, s4, 8192")
    a("s_cmp_lt_u32 s4, 0x100000")
    a(f"s_cbranch_scc1 WARM{nm}")
    a("s_waitcnt vmcnt(0)")
    a("s_lshl_b32 s5, s2, 9")
    a("v_add_u32 v3, s5, v0")
    a(f"v_lshrrev_b32 v3, {RL}, v3")
    a(f"v_and_b32 v8, {(1<<RL)-1}, v0")
    for i in range(NI):
        a(f"v_add_u32 v9, {i*7919+13}, v3")
        a("s_mov_b32 s6, 0x9E3779B1")
        a("v_mul_lo_u32 v9, v9, s6")
        a("v_lshrrev_b32 v10, 15, v9")
        a("v_xor_b32 v9, v9, v10")
        a("s_mov_b32 s6, 0x85EBCA77")
        a("v_mul_lo_u32 v9, v9, s6")
        if W==4:
            a("v_lshrrev_b32 v9, 17, v9")
        else:
            a("v_lshrrev_b32 v9, 15, v9")
        a("v_add_u32 v9, v9, v8")
        a(f"v_lshlrev_b32 v{16+i}, {4 if W==4 else 2}, v9")
    a("s_barrier")
    st(1)
    for i in range(NI):
        if W==4: a(f"buffer_load_dwordx4 v[{32+4*i}:{35+4*i}], v{16+i}, s[36:39], 0 offen")
        else: a(f"buffer_load_dword v{32+4*i}, v{16+i}, s[36:39], 0 offen")
    st(2)
    a("s_waitcnt vmcnt(0)")
    st(3)
    a("s_barrier")
    st(4)
    for i in range(NI):
        if W==4: a(f"buffer_load_dwordx4 v[{32+4*i}:{35+4*i}], v{16+i}, s[36:39], 0 offen")
        else: a(f"buffer_load_dword v{32+4*i}, v{16+i}, s[36:39], 0 offen")
    a("s_waitcnt vmcnt(0)")
    a("s_barrier")
    st(5)
    a(f"s_mov_b32 s{base}, 0")
    asmlib.stamp_flush(a, 6, 36, ki, 200, 3, base)
    a(f"END{nm}:")
    a("s_endpgm")
a('.section .rodata,"a"')
for V in VARS:
    descriptor(a, f"mb{V[0]}_kernel", 208, 96)
open("mb.s","w").write(a.text())
```

```python
class Asm:
    def __init__(self):
        self.lines = []
        self._lab = 0
    def __call__(self, s):
        for ln in s.split("\n"):
            ln = ln.strip()
            if ln:
                if ln.endswith(":") or ln.startswith("."):
                    self.lines.append(ln)
                else:
                    self.lines.append("    " + ln)
    def c(self, s):
        self.lines.append("    ; " + s)
    def label(self, base="L"):
        self._lab += 1
        return f"{base}_{self._lab}"
    def text(self):
        return "\n".join(self.lines) + "\n"

def v(a, n=1):
    return f"v{a}" if n == 1 else f"v[{a}:{a+n-1}]"
def s(a, n=1):
    return f"s{a}" if n == 1 else f"s[{a}:{a+n-1}]"

def interleave(base, ins):
    L = []
    for i, b in enumerate(base):
        L += ins.get(i, [])
        L.append(b)
    L += ins.get(len(base), [])
    return L

import os
LIGHT = int(os.environ.get('LIGHT','1'))
STAMPS = False
DBGM = int(os.environ.get('DBGM','0'))
WS_DBG = 0x2000000
def stamp(a, idx, base=64):
    if not STAMPS: return
    a(f"{'s_memrealtime' if DBGM else 's_memtime'} s[{base+2*idx}:{base+2*idx+1}]")
    if not LIGHT: a("s_waitcnt lgkmcnt(0)")
def stamp_rt(a, idx, base=64):
    if not STAMPS: return
    a(f"s_memrealtime s[{base+2*idx}:{base+2*idx+1}]")
    a("s_waitcnt lgkmcnt(0)")
def stamp_flush(a, n, srd, kernel_idx, vtmp, wave_sgpr, base=64, dbg=()):
    if not STAMPS: return
    if DBGM:
        a("s_mov_b64 exec, 1")
        if kernel_idx == 1:
            a("v_readlane_b32 s0, v23, 0")
            a("v_readlane_b32 s1, v23, 1")
            a("s_nop 4")
        a(f"s_load_dwordx2 s[{srd}:{srd+1}], s[0:1], 72")
        a("s_waitcnt lgkmcnt(0)")
        if kernel_idx == 0:
            a(f"s_add_u32 s{srd}, s{srd}, 512")
            a(f"s_addc_u32 s{srd+1}, s{srd+1}, 0")
        a(f"s_and_b32 s{srd+1}, s{srd+1}, 0xffff")
        a(f"s_mov_b32 s{srd+2}, 256")
        a(f"s_mov_b32 s{srd+3}, 0x00020000")
        a(f"v_mov_b32 v{vtmp+1}, 0")
        for (w, i, inv) in dbg:
            if inv: a(f"v_not_b32 v{vtmp}, s{base+2*i}")
            else: a(f"v_mov_b32 v{vtmp}, s{base+2*i}")
            a(f"buffer_atomic_umax v{vtmp}, v{vtmp+1}, s[{srd}:{srd+3}], 0 offen offset:{4*w}")
            a("s_nop 1")
        return
    a("s_mov_b64 exec, 1")
    a(f"s_lshl_b32 s{base+2*n}, s2, 4")
    a(f"s_add_u32 s{base+2*n}, s{base+2*n}, s{wave_sgpr}")
    a(f"s_lshl_b32 s{base+2*n}, s{base+2*n}, 7")
    a(f"s_add_u32 s{base+2*n}, s{base+2*n}, {WS_DBG + kernel_idx*0x100000}")
    a(f"v_mov_b32 v{vtmp+1}, 0")
    for i in range(n):
        a(f"v_mov_b32 v{vtmp}, s{base+2*i}")
        a(f"buffer_store_dword v{vtmp}, v{vtmp+1}, s[{srd}:{srd+3}], s{base+2*n} offen offset:{4*i}")
        a("s_nop 1")
```

```python
import os
NAME = "gather_scatter__cheap_equivariant_egnn__graph"
N = 10000; E = 320000
NCH = 125; CH = 2560
NG = 105
PRE = int(os.environ.get('PRE','8')); PRES = int(os.environ.get('PRES','0'))
K1_GRID = NCH + NG + 2 + PRE
WS_BP = 0x1000
WS_AP = 0x280000
WS_WHF = 0x500000
WS_CP = 0x510000
WS_REC = 0x520000
REC_STRIDE = CH * 18
WSOFF = int(os.environ.get('WSOFF','0'),0)
WS_SIZE = 0x10000000 - WSOFF
NEG_LOG2E = 0xbfb8aa3b
NEG_LN2 = 0xbf317218
assert WS_BP + 10080*256 <= WS_AP and WS_AP + 1260*2048 <= WS_WHF
def env(n, d): return int(os.environ.get(n, str(d)))
AOUT = env('AOUT', 0); CAL = env('CAL', 0); CALT = env('CALT', 6000)
STF = os.environ.get("STF", "sc1")

def srd(a, d, base, nbytes, add=0, stride=0):
    if add:
        a(f"s_add_u32 s{d}, s{base}, {add}")
        a(f"s_addc_u32 s{d+1}, s{base+1}, 0")
        a(f"s_and_b32 s{d+1}, s{d+1}, 0xffff")
    else:
        a(f"s_mov_b32 s{d}, s{base}")
        a(f"s_and_b32 s{d+1}, s{base+1}, 0xffff")
    if stride:
        a(f"s_or_b32 s{d+1}, s{d+1}, {stride<<16:#x}")
    a(f"s_mov_b32 s{d+2}, {nbytes}")
    a(f"s_mov_b32 s{d+3}, 0x00020000")

def wsoff(a):
    if WSOFF:
        a(f"s_add_u32 s34, s34, {WSOFF:#x}")
        a("s_addc_u32 s35, s35, 0")
```

```python
import sys
import asmlib
from asmlib import Asm
from cfg import *
if "--stamps" in sys.argv: asmlib.STAMPS = True
import importlib, os
SUF=os.environ.get('VER','')
k1=importlib.import_module('k1'+SUF); k2=importlib.import_module('k2'+SUF)

def descriptor(a, name, vgpr, sgpr):
    acc = (vgpr + 3) // 4 * 4
    a(".p2align 6")
    a(f".amdhsa_kernel {name}")
    a.lines.append(f"  .amdhsa_next_free_vgpr {vgpr}")
    a.lines.append(f"  .amdhsa_next_free_sgpr {sgpr}")
    a.lines.append(f"  .amdhsa_accum_offset {acc}")
    a.lines.append("  .amdhsa_group_segment_fixed_size 0")
    a.lines.append("  .amdhsa_kernarg_size 88")
    a.lines.append("  .amdhsa_user_sgpr_count 2")
    a.lines.append("  .amdhsa_user_sgpr_kernarg_segment_ptr 1")
    a.lines.append("  .amdhsa_system_sgpr_workgroup_id_x 1")
    a.lines.append("  .amdhsa_float_denorm_mode_32 3")
    a(".end_amdhsa_kernel")

def main(out_path):
    a = Asm()
    hdr = open("cdna_kernels/%s.s.ref" % NAME).read().split("\n")
    for ln in hdr:
        if ln.startswith(";") and "@launch" not in ln and "Override" not in ln and "grid=ceil" not in ln:
            a.lines.append(ln)
    a.lines.append(f"; @launch kernel=prep_kernel grid=({K1_GRID},1,1) block=(512,1,1) lds={k1.K1_LDS}")
    a.lines.append(f"; @launch kernel={NAME}_kernel grid=({k2.K2_GRID},1,1) block=(512,1,1) lds={k2.K2_LDS}")
    a('.amdgcn_target "amdgcn-amd-amdhsa--gfx950"')
    a(".text")
    a(".globl prep_kernel")
    k1.gen_k1(a)
    a(f".globl {NAME}_kernel")
    k2.gen_k2(a)
    a('.section .rodata,"a"')
    descriptor(a, "prep_kernel", k1.K1_VGPR, k1.K1_SGPR)
    descriptor(a, f"{NAME}_kernel", k2.K2_VGPR, k2.K2_SGPR)
    open(out_path, "w").write(a.text())

if __name__ == "__main__":
    args = [x for x in sys.argv[1:] if not x.startswith("--")]
    out = args[0] if args else f"cdna_kernels/{NAME}.s"
    main(out)
```

```python
class Asm:
    def __init__(self):
        self.lines = []
        self._lab = 0
    def __call__(self, s):
        for ln in s.split("\n"):
            ln = ln.strip()
            if ln:
                if ln.endswith(":") or ln.startswith("."):
                    self.lines.append(ln)
                else:
                    self.lines.append("    " + ln)
    def c(self, s):
        self.lines.append("    ; " + s)
    def label(self, base="L"):
        self._lab += 1
        return f"{base}_{self._lab}"
    def text(self):
        return "\n".join(self.lines) + "\n"

def v(a, n=1):
    return f"v{a}" if n == 1 else f"v[{a}:{a+n-1}]"
def s(a, n=1):
    return f"s{a}" if n == 1 else f"s[{a}:{a+n-1}]"

def interleave(base, ins):
    L = []
    for i, b in enumerate(base):
        L += ins.get(i, [])
        L.append(b)
    L += ins.get(len(base), [])
    return L

import os
LIGHT = int(os.environ.get('LIGHT','1'))
STAMPS = False
DBGM = int(os.environ.get('DBGM','0'))
WS_DBG = 0x2000000
def stamp(a, idx, base=64):
    if not STAMPS: return
    a(f"{'s_memrealtime' if DBGM else 's_memtime'} s[{base+2*idx}:{base+2*idx+1}]")
    if not LIGHT: a("s_waitcnt lgkmcnt(0)")
def stamp_rt(a, idx, base=64):
    if not STAMPS: return
    a(f"s_memrealtime s[{base+2*idx}:{base+2*idx+1}]")
    a("s_waitcnt lgkmcnt(0)")
def stamp_flush(a, n, srd, kernel_idx, vtmp, wave_sgpr, base=64, dbg=()):
    if not STAMPS: return
    if DBGM:
        a("s_mov_b64 exec, 1")
        lab = a.label("DBGSKIP")
        a(f"s_and_b32 s{srd}, s2, 7")
        a(f"s_cmp_lg_u32 s{srd}, 5")
        a(f"s_cbranch_scc1 {lab}")
        a(f"s_cmp_lg_u32 s{wave_sgpr}, 7")
        a(f"s_cbranch_scc1 {lab}")
        if kernel_idx == 1:
            a("v_readlane_b32 s0, v23, 0")
            a("v_readlane_b32 s1, v23, 1")
            a("s_nop 4")
        a(f"s_load_dwordx2 s[{srd}:{srd+1}], s[0:1], 72")
        a("s_waitcnt lgkmcnt(0)")
        if kernel_idx == 0:
            a(f"s_add_u32 s{srd}, s{srd}, 512")
            a(f"s_addc_u32 s{srd+1}, s{srd+1}, 0")
        a(f"s_and_b32 s{srd+1}, s{srd+1}, 0xffff")
        a(f"s_mov_b32 s{srd+2}, 256")
        a(f"s_mov_b32 s{srd+3}, 0x00020000")
        a(f"v_mov_b32 v{vtmp+1}, 0")
        for (w, i, inv) in dbg:
            if inv: a(f"v_not_b32 v{vtmp}, s{base+2*i}")
            else: a(f"v_mov_b32 v{vtmp}, s{base+2*i}")
            a(f"buffer_atomic_umax v{vtmp}, v{vtmp+1}, s[{srd}:{srd+3}], 0 offen offset:{4*w}")
            a("s_nop 1")
        a(f"{lab}:")
        return
    a("s_mov_b64 exec, 1")
    a(f"s_lshl_b32 s{base+2*n}, s2, 4")
    a(f"s_add_u32 s{base+2*n}, s{base+2*n}, s{wave_sgpr}")
    a(f"s_lshl_b32 s{base+2*n}, s{base+2*n}, 7")
    a(f"s_add_u32 s{base+2*n}, s{base+2*n}, {WS_DBG + kernel_idx*0x100000}")
    a(f"v_mov_b32 v{vtmp+1}, 0")
    for i in range(n):
        a(f"v_mov_b32 v{vtmp}, s{base+2*i}")
        a(f"buffer_store_dword v{vtmp}, v{vtmp+1}, s[{srd}:{srd+3}], s{base+2*n} offen offset:{4*i}")
        a("s_nop 1")
```
